```python
import torch

def _softmax(x, axis=-1):
    return torch.softmax(x, dim=axis)
def _gelu(x):
    return torch.nn.functional.gelu(x, approximate="tanh")
def _silu(x):
    return torch.nn.functional.silu(x)
def _sigmoid(x):
    return torch.sigmoid(x)
def _layernorm(x, axis=-1, eps=1e-5):
    m = x.mean(dim=axis, keepdim=True)
    v = x.var(dim=axis, keepdim=True, unbiased=False)
    return (x - m) / torch.sqrt(v + eps)
def _scatter_add(tgt, idx, src, axis=0):
    return tgt.clone().index_add_(axis, idx, src)
def _segment_sum(src, seg, n):
    out = torch.zeros((n,) + src.shape[1:], dtype=src.dtype)
    return out.index_add_(0, seg, src)
def _pad(x, pw):
    flat = tuple(v for pair in reversed(pw) for v in pair)
    return torch.nn.functional.pad(x, flat)

kernel_name = 'gated_mix__linear_kernel_hedgehog__mixer_s_mlp__prompt'

def setup_inputs():

    _w = (lambda a: (lambda t: t.to(torch.bfloat16) if t.is_floating_point() else t)(torch.as_tensor(a)))
    def _A_setup():
        B, S, D, H = 1, 2048, 1024, 32
        Dh = D // H
        return {
            "x": _w((lambda *s: torch.randn(*s, dtype=torch.bfloat16) * 0.05)(B, S, D)),
            "wqkv": _w((lambda *s: torch.randn(*s, dtype=torch.bfloat16) * 1.6)(D, 3 * D)),
            "w_phi": _w((lambda *s: torch.randn(*s, dtype=torch.bfloat16) * 1.6)(H, Dh, Dh) * (Dh ** -0.5)),
            "wo": _w((lambda *s: torch.randn(*s, dtype=torch.bfloat16) * 0.8)(D, D)),
        }
    _A_in = _A_setup()

    def _B_setup():
        B, S, D, F = 1, 2048, 1024, 3584
        return {
            "x":  _w((lambda *s: torch.randn(*s, dtype=torch.bfloat16) * 0.05)(B, S, D)),
            "w1": _w((lambda *s: torch.randn(*s, dtype=torch.bfloat16) * 3.2)(D, D) * (D ** -0.5)),
            "w2": _w((lambda *s: torch.randn(*s, dtype=torch.bfloat16) * 3.2)(D, D) * (D ** -0.5)),
            "w3": _w((lambda *s: torch.randn(*s, dtype=torch.bfloat16) * 3.2)(D, F) * (D ** -0.5)),
            "w4": _w((lambda *s: torch.randn(*s, dtype=torch.bfloat16) * 1.6)(F, D) * (F ** -0.5)),
        }
    _B_in = _B_setup()

    return {
        "A_x": _A_in["x"],
        "A_wqkv": _A_in["wqkv"],
        "A_w_phi": _A_in["w_phi"],
        "A_wo": _A_in["wo"],
        "B_x": _B_in["x"],
        "B_w1": _B_in["w1"],
        "B_w2": _B_in["w2"],
        "B_w3": _B_in["w3"],
        "B_w4": _B_in["w4"],
        "gate_w": _w((lambda *s: torch.randn(*s, dtype=torch.bfloat16) * 0.05)(1024) * 16.0),
    }

def reference(A_x, A_wqkv, A_w_phi, A_wo, B_x, B_w1, B_w2, B_w3, B_w4, gate_w):
    def _A_ref(x, wqkv, w_phi, wo):
        B, S, D = x.shape
        H = 32; Dh = D // H
        qkv = (lambda x, *d: x.permute(*d))((x @ wqkv).reshape(B, S, 3, H, Dh), 2, 0, 3, 1, 4)
        q, k, v = qkv[0], qkv[1], qkv[2]
        pq = torch.einsum("bhsd,hdf->bhsf", q, w_phi)
        pk = torch.einsum("bhsd,hdf->bhsf", k, w_phi)
        phi_q = torch.concatenate([_softmax(pq, axis=-1), _softmax(-pq, axis=-1)], axis=-1)
        phi_k = torch.concatenate([_softmax(pk, axis=-1), _softmax(-pk, axis=-1)], axis=-1)
        kv = torch.einsum("bhsf,bhsd->bhfd", phi_k, v)
        z  = torch.einsum("bhsf->bhf", phi_k)
        num = torch.einsum("bhqf,bhfd->bhqd", phi_q, kv)
        den = torch.einsum("bhqf,bhf->bhq", phi_q, z)[..., None] + 1e-6
        o = num / den
        return (lambda x, *d: x.permute(*d))(o, 0, 2, 1, 3).reshape(B, S, D) @ wo

    def _B_ref(x, w1, w2, w3, w4):
        B, S, D = x.shape
        h = _gelu(_layernorm(x, axis=-1) @ w1)
        c = D // 4
        g0 = _pad(h[:, :, 0*c:1*c], ((0, 0), (1, 0), (0, 0)))[:, :S, :]
        g1 = _pad(h[:, :, 1*c:2*c], ((0, 0), (0, 1), (0, 0)))[:, 1:, :]
        g2 = _pad(h[:, :, 2*c:3*c], ((0, 0), (2, 0), (0, 0)))[:, :S, :]
        g3 = _pad(h[:, :, 3*c:   ], ((0, 0), (0, 2), (0, 0)))[:, 2:, :]
        hs = torch.concatenate([g0, g1, g2, g3], axis=-1) @ w2
        x1 = x + hs
        h2 = _gelu(_layernorm(x1, axis=-1) @ w3) @ w4
        return x1 + h2

    x = A_x
    g = _sigmoid((x * gate_w).sum(-1, keepdims=True))
    a = _A_ref(x, A_wqkv, A_w_phi, A_wo)
    b = _B_ref(x, B_w1, B_w2, B_w3, B_w4)
    return g * a + (1 - g) * b
```

```python
import re

TRANS = ("v_exp_f32", "v_log_f32", "v_rcp_f32", "v_rsq_f32", "v_sqrt_f32", "v_sin_f32",
         "v_cos_f32", "v_rcp_iflag_f32", "v_exp_f16", "v_log_f16", "v_rcp_f16")

VCC = (106, 107)
EXEC = (126, 127)
M0 = 124

_reg_re = re.compile(r"^(-|\||abs\(|neg\()?([vsa])(?:\[(\d+):(\d+)\]|(\d+))\)?\|?$")


def _regs(op):
    op = op.strip()
    if op == "vcc":
        return "s", set(VCC)
    if op == "vcc_lo":
        return "s", {106}
    if op == "vcc_hi":
        return "s", {107}
    if op == "exec":
        return "s", set(EXEC)
    if op == "exec_lo":
        return "s", {126}
    if op == "exec_hi":
        return "s", {127}
    if op == "m0":
        return "s", {M0}
    m = _reg_re.match(op)
    if not m:
        return None, set()
    k = m.group(2)
    if m.group(3) is not None:
        ids = set(range(int(m.group(3)), int(m.group(4)) + 1))
    else:
        ids = {int(m.group(5))}
    if k == "a":
        return "v", {256 + i for i in ids}
    return k, ids


class Ins:
    __slots__ = ("text", "mn", "ops", "mods", "cls", "vw", "vr", "sw", "sr", "passes",
                 "srcc", "label", "target", "nopn", "wide_store_data", "is_dpp", "lds_dma")

    def __init__(self, text):
        self.text = text
        self.label = None
        self.target = None
        self.nopn = 0
        t = text.split(";")[0].strip()
        if t.endswith(":"):
            self.label = t[:-1]
            self.cls = "label"
            self.vw = self.vr = self.sw = self.sr = frozenset()
            self.mn = ""
            return
        parts = t.split(None, 1)
        mn = parts[0]
        self.mn = mn
        rest = parts[1] if len(parts) > 1 else ""
        ops_raw = [o.strip() for o in rest.split(",")] if rest else []
        ops = []
        mods = []
        for i, o in enumerate(ops_raw):
            toks = o.split()
            if not toks:
                continue
            ops.append(toks[0])
            mods += toks[1:]
        self.ops = ops
        self.mods = mods
        self.passes = 0
        self.srcc = frozenset()
        self.wide_store_data = frozenset()
        self.is_dpp = any(m.startswith(("row_", "quad_perm", "wave_", "row_bcast")) for m in mods) or mn.endswith("_dpp")
        self.lds_dma = False
        vw, vr, sw, sr = set(), set(), set(), set()

        def rd(o):
            k, ids = _regs(o)
            if k == "v":
                vr.update(ids)
            elif k == "s":
                sr.update(ids)

        def wr(o):
            k, ids = _regs(o)
            if k == "v":
                vw.update(ids)
            elif k == "s":
                sw.update(ids)

        if mn.startswith(("v_mfma", "v_smfmac")):
            self.cls = "mfma"
            if "32x32" in mn:
                self.passes = 8
            elif "16x16" in mn:
                self.passes = 4
            else:
                self.passes = 2
            if mn in ("v_mfma_f32_32x32x2_f32",):
                self.passes = 16
            wr(ops[0])
            for o in ops[1:]:
                rd(o)
            k, ids = _regs(ops[3])
            self.srcc = frozenset(ids) if k == "v" else frozenset()
        elif mn.startswith("v_"):
            self.cls = "trans" if mn in TRANS else "valu"
            base = mn.replace("_e32", "").replace("_e64", "").replace("_dpp", "").replace("_sdwa", "")
            if base.startswith("v_permlane") and "swap" in base:
                for o in ops:
                    rd(o); wr(o)
            elif base in ("v_add_co_u32", "v_sub_co_u32", "v_subrev_co_u32", "v_addc_co_u32",
                          "v_subb_co_u32", "v_subbrev_co_u32", "v_div_scale_f32", "v_mad_u64_u32"):
                wr(ops[0]); wr(ops[1])
                for o in ops[2:]:
                    rd(o)
            else:
                wr(ops[0])
                for o in ops[1:]:
                    rd(o)
                if base.startswith(("v_fmac", "v_dot2c", "v_pk_fmac", "v_dot4c", "v_dot8c")) or base in ("v_writelane_b32",):
                    rd(ops[0])
                if base in ("v_cndmask_b32",) and len(ops) == 3:
                    sr.update(VCC)
        elif mn.startswith("ds_"):
            self.cls = "ds"
            if mn.startswith(("ds_write", "ds_add", "ds_max", "ds_min", "ds_or")) and "rtn" not in mn:
                for o in ops:
                    rd(o)
            else:
                wr(ops[0])
                for o in ops[1:]:
                    rd(o)
        elif mn.startswith(("buffer_", "global_", "flat_", "scratch_")):
            self.cls = "vmem"
            for m_ in mods:
                if m_.startswith("offset:") and mn.startswith("buffer_"):
                    assert 0 <= int(m_[7:], 0) <= 4095, "MUBUF offset out of range: " + text
            is_lds = "lds" in mods
            self.lds_dma = is_lds
            if is_lds:
                for o in ops:
                    rd(o)
                sr.add(M0)
            elif "_store" in mn:
                for o in ops:
                    rd(o)
                d = ops[0] if mn.startswith("buffer_") else ops[1]
                if "x3" in mn or "x4" in mn:
                    self.wide_store_data = frozenset(_regs(d)[1])
            elif "atomic" in mn:
                for o in ops:
                    rd(o)
                if "sc0" in mods:
                    wr(ops[0])
            else:
                wr(ops[0])
                for o in ops[1:]:
                    rd(o)
        elif mn.startswith("s_"):
            self.cls = "salu"
            if mn == "s_nop":
                self.nopn = int(ops[0], 0)
            elif mn.startswith("s_cbranch") or mn == "s_branch":
                self.cls = "branch"
                self.target = ops[0]
            elif mn.startswith(("s_cmp", "s_bitcmp")):
                for o in ops:
                    rd(o)
            elif mn in ("s_waitcnt", "s_barrier", "s_endpgm", "s_setprio", "s_sleep", "s_sethalt"):
                pass
            elif mn.startswith("s_load") or mn.startswith("s_buffer_load"):
                self.cls = "smem"
                wr(ops[0])
                for o in ops[1:]:
                    rd(o)
            elif "saveexec" in mn:
                wr(ops[0]); sw.update(EXEC)
                for o in ops[1:]:
                    rd(o)
                sr.update(EXEC)
            else:
                wr(ops[0])
                for o in ops[1:]:
                    rd(o)
        else:
            raise ValueError("unknown instruction: " + text)
        self.vw, self.vr, self.sw, self.sr = map(frozenset, (vw, vr, sw, sr))


def _need(prod, cons, dist):
    req = 0
    pc, cc = prod.cls, cons.cls
    p_valu = pc in ("valu", "trans")
    c_valu = cc in ("valu", "trans")
    if p_valu:
        if cc == "mfma" and prod.vw & cons.vr:
            req = max(req, 2)
        if prod.sw:
            if (c_valu or cc == "mfma") and (prod.sw & cons.sr):
                if cons.mn.startswith(("v_readlane", "v_writelane")):
                    req = max(req, 4)
                else:
                    req = max(req, 2)
            if cc == "vmem" and (prod.sw & cons.sr):
                req = max(req, 5)
            if cc in ("salu", "branch", "smem") and (prod.sw & cons.sr):
                req = max(req, 1)
        if prod.vw & cons.vr:
            if cons.mn.startswith(("v_readlane", "v_readfirstlane")):
                req = max(req, 1)
            if cons.mn.startswith("v_permlane"):
                req = max(req, 2)
            if getattr(cons, "is_dpp", False):
                req = max(req, 2)
            if pc == "trans" and cc != "trans":
                req = max(req, 1)
    if pc == "mfma":
        big = {2: 5, 4: 8, 8: 12, 16: 20}[prod.passes]
        if cc == "mfma":
            ab = cons.vr - cons.srcc
            if prod.vw & ab:
                req = max(req, big)
            if prod.vw & cons.srcc:
                if cons.srcc == prod.vw and cons.passes == prod.passes:
                    req = max(req, 2 if prod.passes == 2 else 0)
                else:
                    req = max(req, {2: 4, 4: 6, 8: 10, 16: 18}[prod.passes])
            if (prod.vw & cons.vw) and not (prod.vw & cons.srcc):
                req = max(req, big)
        elif cc in ("valu", "trans", "vmem", "ds"):
            if prod.vw & (cons.vr | cons.vw):
                req = max(req, big)
        if c_valu and (prod.srcc & cons.vw):
            req = max(req, {2: 1, 4: 3, 8: 7, 16: 15}[prod.passes])
    if pc in ("salu",) and M0 in prod.sw:
        if cc == "vmem" and cons.lds_dma:
            req = max(req, 1)
    if pc == "vmem" and prod.wide_store_data:
        if prod.wide_store_data & cons.vw:
            req = max(req, 2 if c_valu else 1)
    return max(0, req - dist)


WINDOW = 22


def fix_hazards(lines):
    ins = [Ins(l) for l in lines]
    changed = True
    total_ins = 0
    i = 0
    while i < len(ins):
        cur = ins[i]
        if cur.cls in ("label",) or cur.mn in ("s_nop", "s_waitcnt", "s_barrier", "s_endpgm"):
            i += 1
            continue
        need = _scan(ins, i, cur)
        if need > 0:
            n = need
            new = []
            while n > 0:
                c = min(n, 16)
                new.append(Ins("s_nop %d" % (c - 1)))
                n -= c
            ins[i:i] = new
            i += len(new)
            total_ins += need
        i += 1
    return [x.text for x in ins], total_ins


def _scan(ins, i, cur):
    best = 0
    stack = [(i - 1, 0)]
    seen = set()
    while stack:
        j, dist = stack.pop()
        while j >= 0 and dist < WINDOW:
            p = ins[j]
            if p.cls == "label":
                key = (j, dist)
                if key not in seen:
                    seen.add(key)
                    for b, q in enumerate(ins):
                        if q.target == p.label:
                            stack.append((b - 1, dist + 1))
                j -= 1
                continue
            if p.mn == "s_branch" or p.mn == "s_endpgm":
                break
            best = max(best, _need(p, cur, dist))
            dist += (p.nopn + 1) if p.mn == "s_nop" else 1
            j -= 1
    return best


class Kernel:
    def __init__(self, name):
        self.name = name
        self.lines = []
        self._lab = 0

    def __call__(self, text):
        for l in text.strip().split("\n"):
            l = l.strip()
            if l and not l.startswith(";"):
                self.lines.append(l)

    def label(self, name):
        self.lines.append(name + ":")

    def newlabel(self, base="L"):
        self._lab += 1
        return "%s_%s_%d" % (self.name, base, self._lab)

    def finish(self):
        out, n = fix_hazards(self.lines)
        self.nops_inserted = n
        return out
```

```python
from gemm import vr, sr

MB_ = 1 << 20
WS_XN1 = 0
WS_QKV = 4 * MB_
WS_HG = 16 * MB_
WS_H = WS_HG + 4096
WS_X1 = 21 * MB_
WS_H3 = 26 * MB_
WS_O = 41 * MB_
WS_G = 46 * MB_
WS_ST = 46 * MB_ + 65536
WS_CS3 = 47 * MB_
WS_KV = 47 * MB_ + 65536
WS_FLAG = 51 * MB_
WS_PART = 52 * MB_
WS_END = 64 * MB_

S, D = 2048, 1024


def srd(k, dst, ptr_lo, nbytes, off=0):
    if off:
        k(f"s_add_u32 s{dst}, s{ptr_lo}, {off}")
        k(f"s_addc_u32 s{dst + 1}, s{ptr_lo + 1}, 0")
    else:
        k(f"s_mov_b32 s{dst}, s{ptr_lo}")
        k(f"s_mov_b32 s{dst + 1}, s{ptr_lo + 1}")
    k(f"s_and_b32 s{dst + 1}, s{dst + 1}, 0xffff")
    k(f"s_mov_b32 s{dst + 2}, {nbytes}")
    k(f"s_mov_b32 s{dst + 3}, 0x00020000")


def allreduce(k, v, t, op="add"):
    ins = {"add": "v_add_f32", "max": "v_max_f32", "min": "v_min_f32"}[op]
    for ctrl in ("quad_perm:[1,0,3,2]", "quad_perm:[2,3,0,1]", "row_half_mirror", "row_mirror"):
        k(f"v_mov_b32_dpp v{t}, v{v} {ctrl} row_mask:0xf bank_mask:0xf")
        k(f"{ins} v{v}, v{v}, v{t}")
    half_reduce16(k, v, t, op)
    half_reduce32(k, v, t, op)


def half_reduce16(k, v, t, op="add"):
    ins = {"add": "v_add_f32", "max": "v_max_f32", "min": "v_min_f32"}[op]
    k(f"v_mov_b32 v{t}, v{v}")
    k(f"v_permlane16_swap_b32 v{v}, v{t}")
    k(f"{ins} v{v}, v{v}, v{t}")


def half_reduce32(k, v, t, op="add"):
    ins = {"add": "v_add_f32", "max": "v_max_f32", "min": "v_min_f32"}[op]
    k(f"v_mov_b32 v{t}, v{v}")
    k(f"v_permlane32_swap_b32 v{v}, v{t}")
    k(f"{ins} v{v}, v{v}, v{t}")


def bf16r2(k, a, b, t):
    k(f"v_cvt_pk_bf16_f32 v{t}, v{a}, v{b}")
    k(f"v_lshlrev_b32 v{a}, 16, v{t}")
    k(f"v_and_b32 v{b}, 0xffff0000, v{t}")


def bf16r1(k, a, t):
    k(f"v_cvt_pk_bf16_f32 v{t}, v{a}, v{a}")
    k(f"v_lshlrev_b32 v{a}, 16, v{t}")


def unpack8(k, src, dst):
    for i in range(4):
        k(f"v_lshlrev_b32 v{dst + 2 * i}, 16, v{src + i}")
        k(f"v_and_b32 v{dst + 2 * i + 1}, 0xffff0000, v{src + i}")


LOG2E = 1.4426950408889634


def gelu_inplace(k, a, n, t, sc):
    s1, s2 = sc
    for i in range(n):
        x = a + i
        k(f"v_mul_f32 v{t}, v{x}, v{x}")
        k(f"v_fma_f32 v{t}, v{t}, s{s2}, v{t + 1}") if False else None
        k(f"v_mov_b32 v{t + 1}, s{s1}") if False else None
        k(f"v_fma_f32 v{t}, v{t}, s{s2}, v{t + 2}")
        k(f"v_mul_f32 v{t}, v{t}, v{x}")
        k(f"v_exp_f32 v{t}, v{t}")
        k(f"v_add_f32 v{t}, 1.0, v{t}")
        k(f"v_rcp_f32 v{t}, v{t}")
        k(f"v_mul_f32 v{x}, v{x}, v{t}")


GELU_C1 = -2.0 * LOG2E * (2.0 / 3.141592653589793) ** 0.5
GELU_C2 = GELU_C1 * 0.044715


def f32hex(x):
    import struct
    return "0x%08x" % struct.unpack("<I", struct.pack("<f", x))[0]
```

```python
from asmdsl import Kernel
import os
EXP = os.environ.get('EXP', '')

BK = 64


class GemmCfg:
    def __init__(self, WM=4, WN=2, MB=2, NB=2, stages=3, NL=int(os.environ.get('NL', '4'))):
        self.WM, self.WN, self.MB, self.NB = WM, WN, MB, NB
        self.NL = NL
        self.BM = WM * MB * 32
        self.BN = WN * NB * 32
        self.nw = WM * WN
        self.stages = stages
        self.a_bytes = self.BM * BK * 2
        self.b_bytes = BK * self.BN * 2
        self.stage_bytes = self.a_bytes + self.b_bytes
        self.lds = self.stage_bytes * stages
        self.nthreads = (self.nw + NL) * 64
        self.a_rows_per_wave = self.BM // NL
        assert self.a_rows_per_wave % 8 == 0
        self.a_dma = self.a_rows_per_wave // 8
        self.b_row_bytes = self.BN * 2
        self.b_rows_per_dma = 1024 // self.b_row_bytes
        self.b_rows_per_wave = BK // NL
        assert self.b_rows_per_wave % self.b_rows_per_dma == 0
        self.b_dma = self.b_rows_per_wave // self.b_rows_per_dma
        self.ndma = self.a_dma + self.b_dma


class Regs:
    def __init__(self, start=0):
        self.n = start

    def alloc(self, cnt, align=1):
        self.n = (self.n + align - 1) // align * align
        r = self.n
        self.n += cnt
        return r


def vr(base, cnt):
    return "v[%d:%d]" % (base, base + cnt - 1)


def sr(base, cnt):
    return "s[%d:%d]" % (base, base + cnt - 1)


class GemmGen:
    def __init__(self, k, cfg, S, fsets=4):
        self.fsets = fsets
        self.k = k
        self.cfg = cfg
        self.S = S
        c = cfg
        R = Regs(0)
        self.acc = R.alloc(c.NB * c.MB * 16, 16)
        self.fx = [R.alloc(c.MB * 4, 4) for _ in range(fsets)]
        self.fw = [R.alloc(c.NB * 4, 4) for _ in range(fsets)]
        self.ax = R.alloc(4 * c.stages)
        self.aw = R.alloc(c.NB * c.stages)
        self.vtid = R.alloc(1)
        self.tmp = R.alloc(0, 4)
        self.R = R

    def accr(self, cb, rb):
        return self.acc + (cb * self.cfg.MB + rb) * 16

    def prologue_common(self):
        k, c, S = self.k, self.cfg, self.S
        t = self.tmp
        k(f"v_mov_b32 v{self.vtid}, v0")
        k(f"v_lshrrev_b32 v{t}, 6, v0")
        k(f"v_readfirstlane_b32 s{S['w']}, v{t}")

    def loader(self, lda, ldb, s_tm, s_tn, advance):
        self.loader_begin()
        self.loader_segment(lda, ldb, s_tm, s_tn, advance)
        self.loader_end()

    def loader_begin(self):
        k, c, S = self.k, self.cfg, self.S
        t = 4
        lane = t
        self.Lcomp = k.newlabel("comp")
        k(f"s_cmp_lt_u32 s{S['w']}, {c.nw}")
        k(f"s_cbranch_scc1 {self.Lcomp}")
        k(f"s_sub_u32 s{S['w']}, s{S['w']}, {c.nw}")
        k(f"v_and_b32 v{lane}, 63, v0")
        k(f"s_mul_i32 s{S['m0a']}, s{S['w']}, {c.a_rows_per_wave * 128}")
        k(f"s_mul_i32 s{S['m0b']}, s{S['w']}, {c.b_rows_per_wave * c.b_row_bytes}")
        k(f"s_add_u32 s{S['m0b']}, s{S['m0b']}, {c.a_bytes}")

    def loader_end(self):
        self.k("s_endpgm")
        self.k.label(self.Lcomp)

    def loader_segment(self, lda, ldb, s_tm, s_tn, advance):
        k, c, S = self.k, self.cfg, self.S
        t = 4
        lane = t
        a, b2, d = t + 2, t + 3, t + 4
        R2 = Regs(t + 8)
        da = R2.alloc(c.a_dma)
        db = R2.alloc(c.b_dma)
        k(f"v_lshrrev_b32 v{a}, 3, v{lane}")
        k(f"v_lshrrev_b32 v{b2}, 4, v{lane}")
        k(f"v_and_b32 v{d}, 7, v{lane}")
        k(f"s_mul_i32 s{S['t0']}, s{s_tm}, {c.BM}")
        k(f"s_mul_i32 s{S['t1']}, s{S['w']}, {c.a_rows_per_wave}")
        k(f"s_add_u32 s{S['t0']}, s{S['t0']}, s{S['t1']}")
        k(f"s_mov_b32 s{S['t1']}, {lda}")
        x, y = t + 5, t + 6
        for j in range(c.a_dma):
            k(f"v_add_u32 v{x}, s{S['t0']}, v{a}")
            if j:
                k(f"v_add_u32 v{x}, {8 * j}, v{x}")
            k(f"v_mul_lo_u32 v{x}, v{x}, s{S['t1']}")
            if j & 1:
                k(f"v_or_b32 v{y}, 4, v{b2}")
                k(f"v_xor_b32 v{y}, v{y}, v{d}")
            else:
                k(f"v_xor_b32 v{y}, v{b2}, v{d}")
            k(f"v_lshlrev_b32 v{y}, 4, v{y}")
            k(f"v_add_u32 v{da + j}, v{x}, v{y}")
        cpr = c.b_row_bytes // 16
        lgc = {16: 4, 8: 3}[cpr]
        k(f"v_lshrrev_b32 v{a}, {lgc}, v{lane}")
        k(f"v_and_b32 v{d}, {cpr - 1}, v{lane}")
        if cpr == 16:
            k(f"v_lshlrev_b32 v{b2}, 2, v{a}")
        else:
            k(f"v_lshrrev_b32 v{b2}, 1, v{a}")
            k(f"v_and_b32 v{b2}, 1, v{b2}")
            k(f"v_lshlrev_b32 v{b2}, 2, v{b2}")
        k(f"v_xor_b32 v{d}, v{d}, v{b2}")
        k(f"v_lshlrev_b32 v{d}, 4, v{d}")
        k(f"s_mul_i32 s{S['t0']}, s{S['w']}, {c.b_rows_per_wave}")
        k(f"s_mul_i32 s{S['t1']}, s{s_tn}, {c.BN * 2}")
        k(f"v_add_u32 v{d}, s{S['t1']}, v{d}")
        k(f"s_mov_b32 s{S['t1']}, {ldb}")
        for j in range(c.b_dma):
            k(f"v_add_u32 v{x}, s{S['t0']}, v{a}")
            if j:
                k(f"v_add_u32 v{x}, {c.b_rows_per_dma * j}, v{x}")
            k(f"v_mul_lo_u32 v{x}, v{x}, s{S['t1']}")
            k(f"v_add_u32 v{db + j}, v{x}, v{d}")

        def dma(stage):
            if 'nodma' in EXP:
                advance(k)
                return
            base = stage * c.stage_bytes
            for j in range(c.a_dma):
                k(f"s_add_u32 m0, s{S['m0a']}, {base + j * 1024}")
                k(f"buffer_load_dwordx4 v{da + j}, {sr(S['srdA'], 4)}, s{S['koffA']} offen lds")
            for j in range(c.b_dma):
                k(f"s_add_u32 m0, s{S['m0b']}, {base + j * 1024}")
                k(f"buffer_load_dwordx4 v{db + j}, {sr(S['srdB'], 4)}, s{S['koffB']} offen lds")
            advance(k)
        nd = c.ndma
        Lloop = k.newlabel("lloop"); Ldone = k.newlabel("ldone")
        dma(0)
        dma(1)
        k.label(Lloop)
        for st in range(c.stages):
            Lw0 = k.newlabel("w0"); Lw1 = k.newlabel("w1"); Lnd = k.newlabel("nd")
            k(f"s_cmp_eq_u32 s{S['cnt']}, 1")
            k(f"s_cbranch_scc1 {Lw0}")
            k(f"s_waitcnt vmcnt({nd})")
            k(f"s_branch {Lw1}")
            k.label(Lw0)
            k(f"s_waitcnt vmcnt(0)")
            k.label(Lw1)
            k("s_barrier")
            k(f"s_cmp_le_u32 s{S['cnt']}, 2")
            k(f"s_cbranch_scc1 {Lnd}")
            dma((st + 2) % c.stages)
            k.label(Lnd)
            k(f"s_sub_u32 s{S['cnt']}, s{S['cnt']}, 1")
            k(f"s_cmp_eq_u32 s{S['cnt']}, 0")
            if st != c.stages - 1:
                k(f"s_cbranch_scc1 {Ldone}")
            else:
                k(f"s_cbranch_scc0 {Lloop}")
        k.label(Ldone)

    def prologue_addr(self, lda, ldb, s_tm, s_tn):
        k, c, S = self.k, self.cfg, self.S
        t = self.tmp
        lane = t
        k(f"v_and_b32 v{lane}, 63, v{self.vtid}")
        lg = {1: 0, 2: 1, 4: 2, 8: 3}[c.WN]
        k(f"s_lshr_b32 s{S['wm']}, s{S['w']}, {lg}")
        k(f"s_and_b32 s{S['wn']}, s{S['w']}, {c.WN - 1}")
        cpr = c.b_row_bytes // 16
        l31, h, s = t + 2, t + 3, t + 4
        k(f"v_and_b32 v{l31}, 31, v{lane}")
        k(f"v_lshrrev_b32 v{h}, 5, v{lane}")
        k(f"v_lshrrev_b32 v{s}, 1, v{lane}")
        k(f"v_and_b32 v{s}, 7, v{s}")
        k(f"s_mul_i32 s{S['t0']}, s{S['wm']}, {c.MB * 32}")
        x = t + 5
        k(f"v_add_u32 v{x}, s{S['t0']}, v{l31}")
        k(f"v_lshlrev_b32 v{x}, 7, v{x}")
        for kk in range(4):
            y = t + 6
            k(f"v_add_u32 v{y}, {kk * 2}, v{h}")
            k(f"v_xor_b32 v{y}, v{y}, v{s}")
            k(f"v_lshlrev_b32 v{y}, 4, v{y}")
            k(f"v_add_u32 v{self.ax + kk}, v{x}, v{y}")
            for st in range(1, c.stages):
                k(f"v_add_u32 v{self.ax + st * 4 + kk}, {st * c.stage_bytes}, v{self.ax + kk}")
        g, r_, c_ = t + 2, t + 3, t + 4
        k(f"v_lshrrev_b32 v{g}, 4, v{lane}")
        k(f"v_and_b32 v{r_}, 15, v{lane}")
        k(f"v_lshrrev_b32 v{r_}, 2, v{r_}")
        k(f"v_and_b32 v{c_}, 3, v{lane}")
        row = t + 5
        k(f"v_lshrrev_b32 v{row}, 1, v{g}")
        k(f"v_lshlrev_b32 v{row}, 3, v{row}")
        k(f"v_add_u32 v{row}, v{row}, v{r_}")
        k(f"v_mul_u32_u24 v{row}, {c.b_row_bytes}, v{row}")
        ch = t + 6
        k(f"v_and_b32 v{ch}, 1, v{g}")
        k(f"v_lshlrev_b32 v{ch}, 1, v{ch}")
        y = t + 7
        k(f"v_lshrrev_b32 v{y}, 1, v{c_}")
        k(f"v_add_u32 v{ch}, v{ch}, v{y}")
        k(f"s_mul_i32 s{S['t0']}, s{S['wn']}, {c.NB * 4}")
        k(f"v_add_u32 v{ch}, s{S['t0']}, v{ch}")
        if cpr == 16:
            k(f"v_lshlrev_b32 v{y}, 2, v{r_}")
        else:
            k(f"v_lshrrev_b32 v{y}, 1, v{r_}")
            k(f"v_lshlrev_b32 v{y}, 2, v{y}")
        k(f"v_and_b32 v{c_}, 1, v{c_}")
        k(f"v_lshlrev_b32 v{c_}, 3, v{c_}")
        k(f"v_add_u32 v{row}, v{row}, v{c_}")
        k(f"v_add_u32 v{row}, {c.a_bytes}, v{row}")
        for cb in range(c.NB):
            z = self.aw + cb
            k(f"v_add_u32 v{z}, {cb * 4}, v{ch}")
            k(f"v_xor_b32 v{z}, v{z}, v{y}")
            k(f"v_lshlrev_b32 v{z}, 4, v{z}")
            k(f"v_add_u32 v{z}, v{z}, v{row}")
            for st in range(1, c.stages):
                k(f"v_add_u32 v{self.aw + st * c.NB + cb}, {st * c.stage_bytes}, v{z}")

    def zero_acc(self):
        c = self.cfg
        for i in range(c.NB * c.MB * 16):
            self.k(f"v_mov_b32 v{self.acc + i}, 0")
        for p in ((2, 3) if self.fsets == 4 else (1,)):
            for i in range(c.MB * 4):
                self.k(f"v_mov_b32 v{self.fx[p] + i}, 0")
            for i in range(c.NB * 4):
                self.k(f"v_mov_b32 v{self.fw[p] + i}, 0")

    def reads(self, stage, kk, p):
        k, c = self.k, self.cfg
        if 'noread' in EXP:
            return
        for rb in range(c.MB):
            k(f"ds_read_b128 {vr(self.fx[p] + rb * 4, 4)}, v{self.ax + stage * 4 + kk} offset:{rb * 4096}")
        for cb in range(c.NB):
            for j in range(2):
                off = (kk * 16 + j * 4) * c.b_row_bytes
                k(f"ds_read_b64_tr_b16 {vr(self.fw[p] + cb * 4 + j * 2, 2)}, v{self.aw + stage * c.NB + cb} offset:{off}")

    def mfmas(self, p):
        k, c = self.k, self.cfg
        if 'nomfma' in EXP:
            return
        for cb in range(c.NB):
            for rb in range(c.MB):
                a = vr(self.accr(cb, rb), 16)
                if 'm16' in EXP:
                    for hh in range(2):
                        a4 = vr(self.accr(cb, rb) + 4 * hh + 8 * (p & 1), 4)
                        k(f"v_mfma_f32_16x16x32_bf16 {a4}, {vr(self.fw[p] + cb * 4, 4)}, {vr(self.fx[p] + rb * 4, 4)}, {a4}")
                    continue
                k(f"v_mfma_f32_32x32x16_bf16 {a}, {vr(self.fw[p] + cb * 4, 4)}, {vr(self.fx[p] + rb * 4, 4)}, {a}")

    def mainloop(self):
        if self.fsets == 4:
            return self.mainloop4()
        k, c, S = self.k, self.cfg, self.S
        nrd = c.MB + 2 * c.NB
        if 'noread' in EXP:
            nrd = 0
        Lloop = k.newlabel("loop")
        Lexit = k.newlabel("exit")
        k.label(Lloop)
        for st in range(c.stages):
            k("s_waitcnt lgkmcnt(0)")
            k("s_barrier")
            self.reads(st, 0, 0)
            self.mfmas(1)
            self.reads(st, 1, 1)
            k(f"s_waitcnt lgkmcnt({nrd})")
            self.mfmas(0)
            self.reads(st, 2, 0)
            k(f"s_waitcnt lgkmcnt({nrd})")
            self.mfmas(1)
            self.reads(st, 3, 1)
            k(f"s_waitcnt lgkmcnt({nrd})")
            self.mfmas(0)
            k(f"s_sub_u32 s{S['cnt']}, s{S['cnt']}, 1")
            k(f"s_cmp_eq_u32 s{S['cnt']}, 0")
            if st != c.stages - 1:
                k(f"s_cbranch_scc1 {Lexit}")
            else:
                k(f"s_cbranch_scc0 {Lloop}")
        k.label(Lexit)
        k("s_waitcnt lgkmcnt(0)")
        self.mfmas(1)

    def mainloop4(self):
        k, c, S = self.k, self.cfg, self.S
        nrd = c.MB + 2 * c.NB
        if 'noread' in EXP:
            nrd = 0
        Lloop = k.newlabel("loop")
        Lexit = k.newlabel("exit")
        k.label(Lloop)
        for st in range(c.stages):
            k("s_waitcnt lgkmcnt(0)")
            k("s_barrier")
            self.reads(st, 0, 0)
            self.mfmas(2)
            self.reads(st, 1, 1)
            self.mfmas(3)
            self.reads(st, 2, 2)
            k(f"s_waitcnt lgkmcnt({min(15, 2 * nrd)})")
            self.mfmas(0)
            self.reads(st, 3, 3)
            k(f"s_waitcnt lgkmcnt({min(15, 2 * nrd)})")
            self.mfmas(1)
            k(f"s_sub_u32 s{S['cnt']}, s{S['cnt']}, 1")
            k(f"s_cmp_eq_u32 s{S['cnt']}, 0")
            if st != c.stages - 1:
                k(f"s_cbranch_scc1 {Lexit}")
            else:
                k(f"s_cbranch_scc0 {Lloop}")
        k.label(Lexit)
        k(f"s_waitcnt lgkmcnt({nrd})")
        self.mfmas(2)
        k("s_waitcnt lgkmcnt(0)")
        self.mfmas(3)
```

```python
import os
from gen import *
import gen


def gemm_setup(k, g, cfg, a_ptr, a_off, a_bytes, b_name, b_bytes, o_off, o_bytes, lda, ldb, ksteps, koffA0=0, adv=None):
    S_ = SG
    load_ptr(k, S_['ws'], "ws")
    load_ptr(k, 6, b_name)
    if a_ptr != "ws":
        load_ptr(k, 4, a_ptr)
    k("s_waitcnt lgkmcnt(0)")
    if a_ptr == "ws":
        srd(k, S_['srdA'], S_['ws'], a_bytes, a_off)
    else:
        srd(k, S_['srdA'], 4, a_bytes)
    srd(k, S_['srdB'], 6, b_bytes)
    if o_off is not None:
        srd(k, S_['srdO'], S_['ws'], o_bytes, o_off)
    k(f"s_mov_b32 s{S_['koffA']}, {koffA0}")
    k(f"s_mov_b32 s{S_['koffB']}, 0")
    k(f"s_mov_b32 s{S_['cnt']}, {ksteps}")
    g.prologue_common()
    g.loader(lda, ldb, S_['tm'], S_['tn'], adv or std_adv(ldb))
    g.prologue_addr(lda, ldb, S_['tm'], S_['tn'])
    g.zero_acc()


def gen_l1():
    cfg = GemmCfg()
    k = Kernel("l1_kernel")
    S_ = SG
    g = GemmGen(k, cfg, S_)
    nq = (S // cfg.BM) * (3072 // cfg.BN)
    n1 = (S // cfg.BM) * (1024 // cfg.BN)
    Lend = k.newlabel("end"); Lw1 = k.newlabel("w1")
    k(f"s_cmp_ge_u32 s2, {nq + n1}")
    k(f"s_cbranch_scc1 {Lend}")
    k(f"s_cmp_ge_u32 s2, {nq}")
    k(f"s_cbranch_scc1 {Lw1}")
    tile_decode(k, 3072 // cfg.BN, 0)
    gemm_setup(k, g, cfg, "A_x", 0, S * D * 2, "wqkv", D * 3072 * 2, WS_QKV, S * 3072 * 2, 2048, 6144, D // 64)
    g.mainloop()
    epilogue_lds(g, 6144)
    k("s_endpgm")
    k.label(Lw1)
    tile_decode(k, 1024 // cfg.BN, nq)
    gemm_setup(k, g, cfg, "ws", WS_XN1, S * D * 2, "w1", D * D * 2, WS_H, S * D * 2, 2048, 2048, D // 64)
    gelu_consts(k)
    g.mainloop()

    def hook(g, ctx, cb, rb, a):
        gelu_block(k, a, 16, ctx['free'])
    free = epilogue_lds(g, 2048, hook=hook)
    k.label(Lend)
    k("s_endpgm")
    return k, g.tmp + 8, nq + n1, cfg.lds, cfg.nthreads


def w2_role(k, g, cfg, base):
    S_ = SG
    tile_decode(k, 1024 // cfg.BN, base)
    sh = [-1, 1, -2, 2]
    def adv(k):
        k(f"s_add_u32 s{S_['koffA']}, s{S_['koffA']}, 128")
        k(f"s_add_u32 s{S_['koffB']}, s{S_['koffB']}, {64 * 2048}")
        k(f"s_add_u32 s{S_['t6']}, s{S_['t6']}, 1")
        for q in range(1, 4):
            d = (sh[q] - sh[q - 1]) * 2048
            k(f"s_cmp_eq_u32 s{S_['t6']}, {4 * q}")
            k(f"s_cselect_b32 s{S_['t3']}, {d & 0xffffffff}, 0")
            k(f"s_add_u32 s{S_['koffA']}, s{S_['koffA']}, s{S_['t3']}")
    k(f"s_mov_b32 s{S_['t6']}, 0")
    gemm_setup(k, g, cfg, "ws", WS_HG, 4096 + S * D * 2 + 4096, "w2", D * D * 2, WS_X1, S * D * 2, 2048, 2048, D // 64,
               koffA0=(2 + sh[0]) * 2048, adv=adv)
    load_ptr(k, 4, "A_x")
    k("s_waitcnt lgkmcnt(0)")
    srd(k, S_['srdX'], 4, S * D * 2)
    srd(k, S_['srdY'], S_['ws'], S * 128, WS_ST)
    g.mainloop()

    st = {}
    def pre(g, ctx):
        f = ctx['free']
        st['xoff'] = f; st['xr'] = f + 4; st['s1'] = f + 12; st['s2'] = f + 13; st['t'] = f + 14; st['so'] = f + 15
        k(f"v_add_u32 v{f}, s{ctx['row0']}, v{ctx['l31']}")
        k(f"v_lshlrev_b32 v{f}, 11, v{f}")
        k(f"v_lshl_add_u32 v{f}, v{ctx['h']}, 3, v{f}")
        k(f"s_lshl_b32 s{S_['t0']}, s{ctx['col0']}, 1")
        k(f"v_add_u32 v{f}, s{S_['t0']}, v{f}")
        k(f"s_mov_b32 s{S_['t1']}, {32 * 2048}")
        so = st['so']
        k(f"v_add_u32 v{so}, s{ctx['row0']}, v{ctx['l31']}")
        k(f"v_lshlrev_b32 v{so}, 7, v{so}")
        k(f"s_lshr_b32 s{S_['t0']}, s{ctx['col0']}, 3")
        k(f"v_add_u32 v{so}, s{S_['t0']}, v{so}")

    def hook(g, ctx, cb, rb, a):
        xr, t = st['xr'], st['t']
        soff = "0" if rb == 0 else f"s{S_['t1']}"
        for q in range(4):
            k(f"buffer_load_dwordx2 {vr(xr + 2 * q, 2)}, v{st['xoff']}, {sr(S_['srdX'], 4)}, {soff} offen offset:{cb * 64 + q * 16}")
        if cb == 0:
            k(f"v_mov_b32 v{st['s1']}, 0")
            k(f"v_mov_b32 v{st['s2']}, 0")
        for i in range(0, 16, 2):
            bf16r2(k, a + i, a + i + 1, t)
        k("s_waitcnt vmcnt(0)")
        for q in range(4):
            for j in range(2):
                i = a + 4 * q + 2 * j
                k(f"v_lshlrev_b32 v{t}, 16, v{xr + 2 * q + j}")
                k(f"v_add_f32 v{i}, v{i}, v{t}")
                k(f"v_and_b32 v{t}, 0xffff0000, v{xr + 2 * q + j}")
                k(f"v_add_f32 v{i + 1}, v{i + 1}, v{t}")
        for i in range(0, 16, 2):
            bf16r2(k, a + i, a + i + 1, t)
        for i in range(16):
            k(f"v_add_f32 v{st['s1']}, v{st['s1']}, v{a + i}")
            k(f"v_fmac_f32 v{st['s2']}, v{a + i}, v{a + i}")
        if cb == cfg.NB - 1:
            half_reduce32(k, st['s1'], t, "add")
            half_reduce32(k, st['s2'], t, "add")
            k(f"v_cmp_gt_u32 vcc, 32, v{ctx['lane']}")
            k("s_and_saveexec_b64 s[56:57], vcc")
            so = st['so']
            k(f"buffer_store_dwordx2 {vr(st['s1'], 2)}, v{so}, {sr(S_['srdY'], 4)}, 0 offen")
            k("s_mov_b64 exec, s[56:57]")
            k(f"v_add_u32 v{so}, 4096, v{so}")
    epilogue_lds(g, 2048, hook=hook, pre=pre)
    k("s_endpgm")


def cs3_role(k, base):
    S_ = SG
    load_ptr(k, S_['ws'], "ws")
    load_ptr(k, 6, "w3")
    k("s_waitcnt lgkmcnt(0)")
    srd(k, S_['srdB'], 6, D * 3584 * 2)
    srd(k, S_['srdO'], S_['ws'], 3584 * 4, WS_CS3)
    k(f"s_sub_u32 s{S_['id']}, s2, {base}")
    k("v_cmp_gt_u32 vcc, 512, v0")
    k("s_and_saveexec_b64 s[56:57], vcc")
    Lx = k.newlabel("csx")
    k(f"s_cbranch_execz {Lx}")
    k("v_and_b32 v1, 15, v0")
    k("v_lshrrev_b32 v2, 4, v0")
    k(f"s_mov_b32 s{S_['t0']}, {32 * 7168}")
    k(f"v_mul_lo_u32 v3, v2, s{S_['t0']}")
    k("v_lshl_add_u32 v3, v1, 4, v3")
    k(f"s_lshl_b32 s{S_['t1']}, s{S_['id']}, 8")
    for i in range(8):
        k(f"v_mov_b32 v{8 + i}, 0")
    for r in range(0, 32, 4):
        for j in range(4):
            k(f"buffer_load_dwordx4 {vr(16 + 4 * j, 4)}, v3, {sr(S_['srdB'], 4)}, s{S_['t1']} offen")
            k(f"v_add_u32 v3, 7168, v3")
        k("s_waitcnt vmcnt(0)")
        for j in range(4):
            unpack8(k, 16 + 4 * j, 32)
            for i in range(8):
                k(f"v_add_f32 v{8 + i}, v{8 + i}, v{32 + i}")
    k("v_lshlrev_b32 v4, 9, v2")
    k("v_lshl_add_u32 v4, v1, 5, v4")
    k("ds_write_b128 v4, v[8:11]")
    k("ds_write_b128 v4, v[12:15] offset:16")
    k("s_waitcnt lgkmcnt(0)")
    k.label(Lx)
    k("s_mov_b64 exec, s[56:57]")
    k("s_barrier")
    k("v_cmp_gt_u32 vcc, 128, v0")
    k("s_and_saveexec_b64 s[56:57], vcc")
    Ly = k.newlabel("csy")
    k(f"s_cbranch_execz {Ly}")
    k("v_lshlrev_b32 v4, 2, v0")
    k("v_mov_b32 v5, 0")
    for r in range(32):
        k(f"ds_read_b32 v6, v4 offset:{r * 512}")
        k("s_waitcnt lgkmcnt(0)")
        k("v_add_f32 v5, v5, v6")
    k(f"s_lshl_b32 s{S_['t1']}, s{S_['id']}, 9")
    k(f"buffer_store_dword v5, v4, {sr(S_['srdO'], 4)}, s{S_['t1']} offen")
    k.label(Ly)
    k("s_endpgm")


KV_HEAD_BYTES = 4096 + 256


def tr_addr_small(k, lane, dst, t, row_bytes, colblk_bytes=0):
    g, r_, c_ = t, t + 1, t + 2
    k(f"v_lshrrev_b32 v{g}, 4, v{lane}")
    k(f"v_and_b32 v{r_}, 15, v{lane}")
    k(f"v_lshrrev_b32 v{r_}, 2, v{r_}")
    k(f"v_and_b32 v{c_}, 3, v{lane}")
    k(f"v_lshrrev_b32 v{dst}, 1, v{g}")
    k(f"v_lshlrev_b32 v{dst}, 3, v{dst}")
    k(f"v_add_u32 v{dst}, v{dst}, v{r_}")
    k(f"v_mul_u32_u24 v{dst}, {row_bytes}, v{dst}")
    k(f"v_and_b32 v{g}, 1, v{g}")
    k(f"v_lshl_add_u32 v{dst}, v{g}, 5, v{dst}")
    k(f"v_lshl_add_u32 v{dst}, v{c_}, 3, v{dst}")


def phi_softmax(k, T, P, N, t):
    mx, mn, t0, t1 = t, t + 1, t + 2, t + 3
    k(f"v_max3_f32 v{mx}, v{T}, v{T + 1}, v{T + 2}")
    k(f"v_min3_f32 v{mn}, v{T}, v{T + 1}, v{T + 2}")
    for i in range(3, 15, 2):
        k(f"v_max3_f32 v{mx}, v{mx}, v{T + i}, v{T + i + 1}")
        k(f"v_min3_f32 v{mn}, v{mn}, v{T + i}, v{T + i + 1}")
    k(f"v_max_f32 v{mx}, v{mx}, v{T + 15}")
    k(f"v_min_f32 v{mn}, v{mn}, v{T + 15}")
    half_reduce32(k, mx, t0, "max")
    half_reduce32(k, mn, t0, "min")
    for i in range(16):
        k(f"v_sub_f32 v{P + i}, v{T + i}, v{mx}")
        k(f"v_mul_f32 v{P + i}, {f32hex(LOG2E)}, v{P + i}")
        k(f"v_exp_f32 v{P + i}, v{P + i}")
        k(f"v_sub_f32 v{N + i}, v{mn}, v{T + i}")
        k(f"v_mul_f32 v{N + i}, {f32hex(LOG2E)}, v{N + i}")
        k(f"v_exp_f32 v{N + i}, v{N + i}")
    k(f"v_add_f32 v{mx}, v{P}, v{P + 1}")
    k(f"v_add_f32 v{mn}, v{N}, v{N + 1}")
    for i in range(2, 16):
        k(f"v_add_f32 v{mx}, v{mx}, v{P + i}")
        k(f"v_add_f32 v{mn}, v{mn}, v{N + i}")
    half_reduce32(k, mx, t0, "add")
    half_reduce32(k, mn, t0, "add")
    k(f"v_rcp_f32 v{mx}, v{mx}")
    k(f"v_rcp_f32 v{mn}, v{mn}")
    for i in range(16):
        k(f"v_mul_f32 v{P + i}, v{P + i}, v{mx}")
        k(f"v_mul_f32 v{N + i}, v{N + i}, v{mn}")


def kside_role(k, base):
    S_ = SG
    Lx = k.newlabel("ksx")
    load_ptr(k, S_['ws'], "ws")
    load_ptr(k, 6, "w_phi")
    k("v_lshrrev_b32 v1, 6, v0")
    k(f"v_readfirstlane_b32 s{S_['w']}, v1")
    k(f"s_cmp_ge_u32 s{S_['w']}, 8")
    k(f"s_cbranch_scc1 {Lx}")
    k(f"s_sub_u32 s{S_['id']}, s2, {base}")
    k("s_waitcnt lgkmcnt(0)")
    srd(k, S_['srdA'], S_['ws'], S * 3072 * 2, WS_QKV)
    srd(k, S_['srdB'], 6, 32 * 32 * 32 * 2)
    srd(k, S_['srdO'], S_['ws'], 32 * KV_HEAD_BYTES, WS_KV)
    lane = 2
    k(f"v_and_b32 v{lane}, 63, v0")
    LW = 0
    WREG = 4096
    k("v_lshlrev_b32 v3, 4, v2")
    Lnw = k.newlabel("nw")
    k(f"s_cmp_lg_u32 s{S_['w']}, 0")
    k(f"s_cbranch_scc1 {Lnw}")
    k(f"s_lshl_b32 s{S_['t0']}, s{S_['id']}, 11")
    k("s_mov_b32 m0, 0")
    k(f"buffer_load_dwordx4 v3, {sr(S_['srdB'], 4)}, s{S_['t0']} offen lds")
    k(f"s_add_u32 s{S_['t0']}, s{S_['t0']}, 1024")
    k("s_mov_b32 m0, 1024")
    k(f"buffer_load_dwordx4 v3, {sr(S_['srdB'], 4)}, s{S_['t0']} offen lds")
    k("s_waitcnt vmcnt(0)")
    k.label(Lnw)
    k("s_barrier")
    a_w, a_phi, a_v = 4, 5, 6
    tr_addr_small(k, lane, a_w, 10, 64)
    tr_addr_small(k, lane, a_phi, 10, 128)
    tr_addr_small(k, lane, a_v, 10, 64)
    k(f"s_mul_i32 s{S_['t2']}, s{S_['w']}, 6144")
    k(f"s_add_u32 s{S_['t2']}, s{S_['t2']}, {WREG}")
    k(f"v_add_u32 v{a_phi}, s{S_['t2']}, v{a_phi}")
    k(f"v_add_u32 v{a_v}, s{S_['t2']}, v{a_v}")
    k(f"v_add_u32 v{a_v}, 4096, v{a_v}")
    for kk in range(2):
        for j in range(2):
            k(f"ds_read_b64_tr_b16 {vr(16 + kk * 4 + j * 2, 2)}, v{a_w} offset:{(kk * 16 + j * 4) * 64}")
    l31, h = 7, 8
    k(f"v_and_b32 v{l31}, 31, v{lane}")
    k(f"v_lshrrev_b32 v{h}, 5, v{lane}")
    koff = 9
    k(f"s_lshl_b32 s{S_['t0']}, s{S_['w']}, 8")
    k(f"v_add_u32 v{koff}, s{S_['t0']}, v{l31}")
    k(f"s_mov_b32 s{S_['t1']}, 6144")
    k(f"v_mul_lo_u32 v{koff}, v{koff}, s{S_['t1']}")
    k(f"v_lshl_add_u32 v{koff}, v{h}, 4, v{koff}")
    k(f"s_lshl_b32 s{S_['t0']}, s{S_['id']}, 6")
    k(f"s_add_u32 s{S_['t0']}, s{S_['t0']}, 2048")
    k(f"v_add_u32 v{koff}, s{S_['t0']}, v{koff}")
    voff = 10
    k(f"v_lshrrev_b32 v{voff}, 2, v{lane}")
    k(f"s_lshl_b32 s{S_['t1']}, s{S_['w']}, 8")
    k(f"v_add_u32 v{voff}, s{S_['t1']}, v{voff}")
    k(f"s_mov_b32 s{S_['t1']}, 6144")
    k(f"v_mul_lo_u32 v{voff}, v{voff}, s{S_['t1']}")
    k(f"v_and_b32 v11, 3, v{lane}")
    k(f"v_lshl_add_u32 v{voff}, v11, 4, v{voff}")
    k(f"s_add_u32 s{S_['t0']}, s{S_['t0']}, 2048")
    k(f"v_add_u32 v{voff}, s{S_['t0']}, v{voff}")
    pw = 11
    k(f"v_lshlrev_b32 v{pw}, 7, v{l31}")
    k(f"v_lshl_add_u32 v{pw}, v{h}, 3, v{pw}")
    k(f"v_add_u32 v{pw}, s{S_['t2']}, v{pw}")
    ones = 24
    for i in range(4):
        k(f"v_mov_b32 v{ones + i}, 0x3f803f80")
    KF, T, P, N, TMP = 28, 36, 52, 68, 84
    PF, VF = 88, 96
    AKV, AZ = 100, 132
    for i in range(64):
        k(f"v_mov_b32 v{AKV + i}, 0")
    k(f"s_mov_b32 s{S_['cnt']}, 8")
    Lloop = k.newlabel("ksl")
    k.label(Lloop)
    k(f"buffer_load_dwordx4 {vr(KF, 4)}, v{koff}, {sr(S_['srdA'], 4)}, 0 offen")
    k(f"buffer_load_dwordx4 {vr(KF + 4, 4)}, v{koff}, {sr(S_['srdA'], 4)}, 0 offen offset:32")
    k(f"s_add_u32 m0, s{S_['t2']}, 4096")
    k(f"buffer_load_dwordx4 v{voff}, {sr(S_['srdA'], 4)}, 0 offen lds")
    k(f"v_add_u32 v{voff}, {16 * 6144}, v{voff}")
    k(f"s_add_u32 m0, s{S_['t2']}, 5120")
    k(f"buffer_load_dwordx4 v{voff}, {sr(S_['srdA'], 4)}, 0 offen lds")
    k(f"v_add_u32 v{voff}, {16 * 6144}, v{voff}")
    k(f"v_add_u32 v{koff}, {32 * 6144}, v{koff}")
    k("s_waitcnt vmcnt(0) lgkmcnt(0)")
    k(f"v_mfma_f32_32x32x16_bf16 {vr(T, 16)}, {vr(16, 4)}, {vr(KF, 4)}, 0")
    k(f"v_mfma_f32_32x32x16_bf16 {vr(T, 16)}, {vr(20, 4)}, {vr(KF + 4, 4)}, {vr(T, 16)}")
    for i in range(0, 16, 2):
        bf16r2(k, T + i, T + i + 1, TMP)
    phi_softmax(k, T, P, N, TMP)
    for q in range(4):
        k(f"v_cvt_pk_bf16_f32 v{T + 2 * q}, v{P + 4 * q}, v{P + 4 * q + 1}")
        k(f"v_cvt_pk_bf16_f32 v{T + 2 * q + 1}, v{P + 4 * q + 2}, v{P + 4 * q + 3}")
        k(f"v_cvt_pk_bf16_f32 v{T + 8 + 2 * q}, v{N + 4 * q}, v{N + 4 * q + 1}")
        k(f"v_cvt_pk_bf16_f32 v{T + 8 + 2 * q + 1}, v{N + 4 * q + 2}, v{N + 4 * q + 3}")
    for q in range(4):
        k(f"ds_write_b64 v{pw}, {vr(T + 2 * q, 2)} offset:{q * 16}")
        k(f"ds_write_b64 v{pw}, {vr(T + 8 + 2 * q, 2)} offset:{64 + q * 16}")
    k("s_waitcnt lgkmcnt(0)")
    for kk in range(2):
        for fb in range(2):
            for j in range(2):
                k(f"ds_read_b64_tr_b16 {vr(PF + fb * 4 + j * 2, 2)}, v{a_phi} offset:{(kk * 16 + j * 4) * 128 + fb * 64}")
        for j in range(2):
            k(f"ds_read_b64_tr_b16 {vr(VF + j * 2, 2)}, v{a_v} offset:{(kk * 16 + j * 4) * 64}")
        k("s_waitcnt lgkmcnt(0)")
        for fb in range(2):
            k(f"v_mfma_f32_32x32x16_bf16 {vr(AKV + fb * 16, 16)}, {vr(PF + fb * 4, 4)}, {vr(VF, 4)}, {vr(AKV + fb * 16, 16)}")
            k(f"v_mfma_f32_32x32x16_bf16 {vr(AZ + fb * 16, 16)}, {vr(PF + fb * 4, 4)}, {vr(ones, 4)}, {vr(AZ + fb * 16, 16)}")
    k(f"s_sub_u32 s{S_['cnt']}, s{S_['cnt']}, 1")
    k(f"s_cmp_lg_u32 s{S_['cnt']}, 0")
    k(f"s_cbranch_scc1 {Lloop}")
    RED, ZRED = 53248, 53248 + 65536
    ra = 4
    k(f"v_lshlrev_b32 v{ra}, 2, v{l31}")
    k(f"v_lshl_add_u32 v{ra}, v{h}, 9, v{ra}")
    k(f"s_lshl_b32 s{S_['t0']}, s{S_['w']}, 13")
    k(f"v_add_u32 v{ra}, s{S_['t0']}, v{ra}")
    k(f"v_add_u32 v{ra}, {RED}, v{ra}")
    for fb in range(2):
        for v in range(16):
            F = fb * 32 + (v & 3) + 8 * (v >> 2)
            k(f"ds_write_b32 v{ra}, v{AKV + fb * 16 + v} offset:{F * 128}")
    za = 5
    k(f"v_lshlrev_b32 v{za}, 4, v{h}")
    k(f"s_lshl_b32 s{S_['t0']}, s{S_['w']}, 8")
    k(f"v_add_u32 v{za}, s{S_['t0']}, v{za}")
    k(f"v_add_u32 v{za}, {ZRED}, v{za}")
    k(f"v_cmp_eq_u32 vcc, 0, v{l31}")
    k("s_and_saveexec_b64 s[56:57], vcc")
    for fb in range(2):
        for v in range(16):
            F = fb * 32 + (v & 3) + 8 * (v >> 2)
            k(f"ds_write_b32 v{za}, v{AZ + fb * 16 + v} offset:{F * 4}")
    k("s_mov_b64 exec, s[56:57]")
    k("s_waitcnt lgkmcnt(0)")
    k("s_barrier")
    jj, hh, dd, hf = 6, 7, 8, 9
    k(f"v_lshrrev_b32 v{jj}, 7, v0")
    k(f"v_bfe_u32 v{hh}, v0, 6, 1")
    k(f"v_bfe_u32 v{dd}, v0, 1, 5")
    k(f"v_and_b32 v{hf}, 1, v0")
    F0 = 10
    k(f"v_lshlrev_b32 v{F0}, 4, v{jj}")
    k(f"v_lshl_add_u32 v{F0}, v{hf}, 3, v{F0}")
    k(f"v_lshl_add_u32 v{F0}, v{hh}, 2, v{F0}")
    ad = 11
    k(f"v_lshlrev_b32 v{ad}, 7, v{F0}")
    k(f"v_lshl_add_u32 v{ad}, v{dd}, 2, v{ad}")
    k(f"v_add_u32 v{ad}, {RED}, v{ad}")
    for i in range(4):
        k(f"v_mov_b32 v{12 + i}, 0")
    for w in range(8):
        for i in range(4):
            k(f"ds_read_b32 v{16 + i}, v{ad} offset:{i * 128}")
        k(f"v_add_u32 v{ad}, 8192, v{ad}")
        k("s_waitcnt lgkmcnt(0)")
        for i in range(4):
            k(f"v_add_f32 v{12 + i}, v{12 + i}, v{16 + i}")
    k("v_cvt_pk_bf16_f32 v20, v12, v13")
    k("v_cvt_pk_bf16_f32 v21, v14, v15")
    so = 22
    k(f"v_lshrrev_b32 v{so}, 6, v0")
    k(f"v_lshlrev_b32 v{so}, 9, v{so}")
    k(f"v_lshl_add_u32 v{so}, v{dd}, 4, v{so}")
    k(f"v_lshl_add_u32 v{so}, v{hf}, 3, v{so}")
    k(f"s_mul_i32 s{S_['t0']}, s{S_['id']}, {KV_HEAD_BYTES}")
    k(f"buffer_store_dwordx2 v[20:21], v{so}, {sr(S_['srdO'], 4)}, s{S_['t0']} offen")
    k("v_cmp_gt_u32 vcc, 64, v0")
    k("s_and_saveexec_b64 s[56:57], vcc")
    Lz = k.newlabel("ksz")
    k(f"s_cbranch_execz {Lz}")
    k("v_lshlrev_b32 v11, 2, v0")
    k(f"v_add_u32 v11, {ZRED}, v11")
    k("v_mov_b32 v12, 0")
    for w in range(8):
        k(f"ds_read_b32 v16, v11 offset:{w * 256}")
        k("s_waitcnt lgkmcnt(0)")
        k("v_add_f32 v12, v12, v16")
    bf16r1(k, 12, 13)
    k("v_lshrrev_b32 v13, 4, v0")
    k("v_bfe_u32 v14, v0, 2, 1")
    k("v_lshl_add_u32 v13, v13, 1, v14")
    k("v_lshlrev_b32 v13, 3, v13")
    k("v_bfe_u32 v14, v0, 3, 1")
    k("v_lshl_add_u32 v13, v14, 2, v13")
    k("v_and_b32 v14, 3, v0")
    k("v_add_u32 v13, v13, v14")
    k("v_lshlrev_b32 v13, 2, v13")
    k(f"s_add_u32 s{S_['t0']}, s{S_['t0']}, 4096")
    k(f"buffer_store_dword v12, v13, {sr(S_['srdO'], 4)}, s{S_['t0']} offen")
    k.label(Lz)
    k.label(Lx)
    k("s_endpgm")


def gen_l2():
    cfg = GemmCfg()
    k = Kernel("l2_kernel")
    S_ = SG
    g = GemmGen(k, cfg, S_)
    n2 = (S // cfg.BM) * (1024 // cfg.BN)
    nk, nc = 32, 28
    Lend = k.newlabel("end"); Lks = k.newlabel("ks"); Lcs = k.newlabel("cs")
    k(f"s_cmp_ge_u32 s2, {nk + n2 + nc}")
    k(f"s_cbranch_scc1 {Lend}")
    k(f"s_cmp_lt_u32 s2, {nk}")
    k(f"s_cbranch_scc1 {Lks}")
    k(f"s_cmp_ge_u32 s2, {nk + n2}")
    k(f"s_cbranch_scc1 {Lcs}")
    w2_role(k, g, cfg, nk)
    k.label(Lks)
    kside_role(k, 0)
    k.label(Lcs)
    cs3_role(k, nk + n2)
    k.label(Lend)
    k("s_endpgm")
    return k, 168, nk + n2 + nc, cfg.lds, cfg.nthreads


def w3_role(k, g, cfg, base):
    S_ = SG
    tile_decode(k, 3584 // cfg.BN, base)
    gemm_setup(k, g, cfg, "ws", WS_X1, S * D * 2, "w3", D * 3584 * 2, WS_H3, S * 3584 * 2, 2048, 7168, D // 64)
    gelu_consts(k)
    srd(k, S_['srdX'], S_['ws'], S * 128, WS_ST)
    srd(k, S_['srdY'], S_['ws'], 3584 * 4, WS_CS3)
    g.mainloop()
    st = {}

    def pre(g, ctx):
        f = ctx['free']
        st['cs'] = f; st['mb'] = f + 32; st['ri'] = f + 34; st['t'] = f + 36; st['ld'] = f + 40
        o = st['t']
        k(f"v_lshlrev_b32 v{o}, 4, v{ctx['h']}")
        k(f"s_lshl_b32 s{S_['t0']}, s{ctx['col0']}, 2")
        k(f"v_add_u32 v{o}, s{S_['t0']}, v{o}")
        for cb in range(2):
            for q in range(4):
                k(f"buffer_load_dwordx4 {vr(f + (cb * 4 + q) * 4, 4)}, v{o}, {sr(S_['srdY'], 4)}, 0 offen offset:{cb * 128 + q * 32}")
        so = st['t'] + 1
        k(f"v_add_u32 v{so}, s{ctx['row0']}, v{ctx['l31']}")
        k(f"v_lshlrev_b32 v{so}, 7, v{so}")
        for rb in range(cfg.MB):
            ld = st['ld']
            for j in range(8):
                k(f"buffer_load_dwordx4 {vr(ld + 4 * j, 4)}, v{so}, {sr(S_['srdX'], 4)}, 0 offen offset:{j * 16}")
            k("s_waitcnt vmcnt(0)")
            s1, s2 = st['mb'] + rb, st['ri'] + rb
            k(f"v_add_f32 v{s1}, v{ld}, v{ld + 2}")
            k(f"v_add_f32 v{s2}, v{ld + 1}, v{ld + 3}")
            for j in range(2, 16):
                k(f"v_add_f32 v{s1}, v{s1}, v{ld + 2 * j}")
                k(f"v_add_f32 v{s2}, v{s2}, v{ld + 2 * j + 1}")
            k(f"v_mul_f32 v{s1}, {f32hex(1.0 / D)}, v{s1}")
            k(f"v_mul_f32 v{s2}, {f32hex(1.0 / D)}, v{s2}")
            tt = st['t'] + 2
            k(f"v_fma_f32 v{s2}, -v{s1}, v{s1}, v{s2}")
            k(f"v_max_f32 v{s2}, 0, v{s2}")
            bf16r2(k, s1, s2, tt)
            k(f"v_add_f32 v{s2}, {f32hex(1e-5)}, v{s2}")
            bf16r1(k, s2, tt)
            k(f"v_sqrt_f32 v{s2}, v{s2}")
            bf16r1(k, s2, tt)
            k(f"v_rcp_f32 v{s2}, v{s2}")
            if rb != cfg.MB - 1:
                k(f"v_add_u32 v{so}, 4096, v{so}")

    def hook(g, ctx, cb, rb, a):
        cs = st['cs'] + cb * 16
        for i in range(16):
            k(f"v_fma_f32 v{a + i}, -v{st['mb'] + rb}, v{cs + i}, v{a + i}")
            k(f"v_mul_f32 v{a + i}, v{a + i}, v{st['ri'] + rb}")
        gelu_block(k, a, 16, st['t'])
    epilogue_lds(g, 7168, hook=hook, pre=pre)
    k("s_endpgm")


def qside_role(k, base):
    S_ = SG
    Lx = k.newlabel("qsx")
    load_ptr(k, S_['ws'], "ws")
    load_ptr(k, 6, "w_phi")
    k("v_lshrrev_b32 v1, 6, v0")
    k(f"v_readfirstlane_b32 s{S_['w']}, v1")
    k(f"s_cmp_ge_u32 s{S_['w']}, 8")
    k(f"s_cbranch_scc1 {Lx}")
    k(f"s_sub_u32 s{S_['id']}, s2, {base}")
    k("s_waitcnt lgkmcnt(0)")
    srd(k, S_['srdA'], S_['ws'], S * 3072 * 2, WS_QKV)
    srd(k, S_['srdB'], 6, 32 * 32 * 32 * 2)
    srd(k, S_['srdO'], S_['ws'], S * D * 2, WS_O)
    srd(k, S_['srdX'], S_['ws'], 32 * KV_HEAD_BYTES, WS_KV)
    lane = 2
    k(f"v_and_b32 v{lane}, 63, v0")
    k("v_lshlrev_b32 v3, 4, v2")
    Lnw = k.newlabel("nw")
    k(f"s_cmp_lg_u32 s{S_['w']}, 0")
    k(f"s_cbranch_scc1 {Lnw}")
    k(f"s_lshl_b32 s{S_['t0']}, s{S_['id']}, 11")
    k("s_mov_b32 m0, 0")
    k(f"buffer_load_dwordx4 v3, {sr(S_['srdB'], 4)}, s{S_['t0']} offen lds")
    k(f"s_add_u32 s{S_['t0']}, s{S_['t0']}, 1024")
    k("s_mov_b32 m0, 1024")
    k(f"buffer_load_dwordx4 v3, {sr(S_['srdB'], 4)}, s{S_['t0']} offen lds")
    k("s_waitcnt vmcnt(0)")
    k.label(Lnw)
    k("s_barrier")
    a_w = 4
    tr_addr_small(k, lane, a_w, 10, 64)
    for kk in range(2):
        for j in range(2):
            k(f"ds_read_b64_tr_b16 {vr(16 + kk * 4 + j * 2, 2)}, v{a_w} offset:{(kk * 16 + j * 4) * 64}")
    l31, h = 7, 8
    k(f"v_and_b32 v{l31}, 31, v{lane}")
    k(f"v_lshrrev_b32 v{h}, 5, v{lane}")
    koff = 9
    k(f"s_lshl_b32 s{S_['t0']}, s{S_['w']}, 8")
    k(f"v_add_u32 v{koff}, s{S_['t0']}, v{l31}")
    k(f"s_mov_b32 s{S_['t1']}, 6144")
    k(f"v_mul_lo_u32 v{koff}, v{koff}, s{S_['t1']}")
    k(f"v_lshl_add_u32 v{koff}, v{h}, 4, v{koff}")
    k(f"s_lshl_b32 s{S_['t0']}, s{S_['id']}, 6")
    k(f"v_add_u32 v{koff}, s{S_['t0']}, v{koff}")
    ooff = 10
    k(f"s_lshl_b32 s{S_['t1']}, s{S_['w']}, 8")
    k(f"v_add_u32 v{ooff}, s{S_['t1']}, v{l31}")
    k(f"v_lshlrev_b32 v{ooff}, 11, v{ooff}")
    k(f"v_lshl_add_u32 v{ooff}, v{h}, 4, v{ooff}")
    k(f"v_add_u32 v{ooff}, s{S_['t0']}, v{ooff}")
    KVF, ZF = 24, 40
    x = 11
    k(f"v_lshlrev_b32 v{x}, 9, v{h}")
    k(f"v_lshl_add_u32 v{x}, v{l31}, 4, v{x}")
    k(f"s_mul_i32 s{S_['t0']}, s{S_['id']}, {KV_HEAD_BYTES}")
    for jj in range(4):
        k(f"buffer_load_dwordx4 {vr(KVF + jj * 4, 4)}, v{x}, {sr(S_['srdX'], 4)}, s{S_['t0']} offen offset:{jj * 1024}")
    k(f"v_lshlrev_b32 v{x}, 5, v{h}")
    k(f"s_add_u32 s{S_['t0']}, s{S_['t0']}, 4096")
    for jj in range(4):
        for j in range(2):
            k(f"buffer_load_dwordx4 {vr(ZF + jj * 8 + j * 4, 4)}, v{x}, {sr(S_['srdX'], 4)}, s{S_['t0']} offen offset:{jj * 64 + j * 16}")
    KF, T, P, N, TMP = 72, 80, 96, 112, 128
    NUM = 132
    k(f"s_mov_b32 s{S_['cnt']}, 8")
    Lloop = k.newlabel("qsl")
    k.label(Lloop)
    k(f"buffer_load_dwordx4 {vr(KF, 4)}, v{koff}, {sr(S_['srdA'], 4)}, 0 offen")
    k(f"buffer_load_dwordx4 {vr(KF + 4, 4)}, v{koff}, {sr(S_['srdA'], 4)}, 0 offen offset:32")
    k(f"v_add_u32 v{koff}, {32 * 6144}, v{koff}")
    k("s_waitcnt vmcnt(0) lgkmcnt(0)")
    k(f"v_mfma_f32_32x32x16_bf16 {vr(T, 16)}, {vr(16, 4)}, {vr(KF, 4)}, 0")
    k(f"v_mfma_f32_32x32x16_bf16 {vr(T, 16)}, {vr(20, 4)}, {vr(KF + 4, 4)}, {vr(T, 16)}")
    for i in range(0, 16, 2):
        bf16r2(k, T + i, T + i + 1, TMP)
    phi_softmax(k, T, P, N, TMP)
    for i in range(8):
        k(f"v_cvt_pk_bf16_f32 v{T + i}, v{P + 2 * i}, v{P + 2 * i + 1}")
        k(f"v_cvt_pk_bf16_f32 v{T + 8 + i}, v{N + 2 * i}, v{N + 2 * i + 1}")
    k(f"v_mfma_f32_32x32x16_bf16 {vr(NUM, 16)}, {vr(KVF, 4)}, {vr(T, 4)}, 0")
    for jj in range(1, 4):
        k(f"v_mfma_f32_32x32x16_bf16 {vr(NUM, 16)}, {vr(KVF + 4 * jj, 4)}, {vr(T + 4 * jj, 4)}, {vr(NUM, 16)}")
    den = TMP
    k(f"v_mov_b32 v{den}, 0")
    for i in range(16):
        k(f"v_lshlrev_b32 v{TMP + 1}, 16, v{T + i}")
        k(f"v_fmac_f32 v{den}, v{TMP + 1}, v{ZF + 2 * i}")
        k(f"v_and_b32 v{TMP + 1}, 0xffff0000, v{T + i}")
        k(f"v_fmac_f32 v{den}, v{TMP + 1}, v{ZF + 2 * i + 1}")
    half_reduce32(k, den, TMP + 1, "add")
    bf16r1(k, den, TMP + 1)
    k(f"v_add_f32 v{den}, {f32hex(1e-6)}, v{den}")
    bf16r1(k, den, TMP + 1)
    k(f"v_rcp_f32 v{den}, v{den}")
    for i in range(0, 16, 2):
        bf16r2(k, NUM + i, NUM + i + 1, TMP + 1)
    for i in range(16):
        k(f"v_mul_f32 v{NUM + i}, v{NUM + i}, v{den}")
    for q in range(4):
        k(f"v_cvt_pk_bf16_f32 v{P + 2 * q}, v{NUM + 4 * q}, v{NUM + 4 * q + 1}")
        k(f"v_cvt_pk_bf16_f32 v{P + 2 * q + 1}, v{NUM + 4 * q + 2}, v{NUM + 4 * q + 3}")
    for q in (0, 2):
        k(f"v_permlane32_swap_b32 v{P + 2 * q}, v{P + 2 * q + 2}")
        k(f"v_permlane32_swap_b32 v{P + 2 * q + 1}, v{P + 2 * q + 3}")
    k(f"buffer_store_dwordx4 {vr(P, 4)}, v{ooff}, {sr(S_['srdO'], 4)}, 0 offen")
    k(f"buffer_store_dwordx4 {vr(P + 4, 4)}, v{ooff}, {sr(S_['srdO'], 4)}, 0 offen offset:32")
    k(f"v_add_u32 v{ooff}, {32 * 2048}, v{ooff}")
    k(f"s_sub_u32 s{S_['cnt']}, s{S_['cnt']}, 1")
    k(f"s_cmp_lg_u32 s{S_['cnt']}, 0")
    k(f"s_cbranch_scc1 {Lloop}")
    k.label(Lx)
    k("s_endpgm")


def gen_l3():
    cfg = GemmCfg()
    k = Kernel("l3_kernel")
    g = GemmGen(k, cfg, SG)
    n3 = (S // cfg.BM) * (3584 // cfg.BN)
    nq = 32
    Lend = k.newlabel("end"); Lqs = k.newlabel("qs")
    k(f"s_cmp_ge_u32 s2, {nq + n3}")
    k(f"s_cbranch_scc1 {Lend}")
    k(f"s_cmp_lt_u32 s2, {nq}")
    k(f"s_cbranch_scc1 {Lqs}")
    w3_role(k, g, cfg, nq)
    k.label(Lqs)
    qside_role(k, 0)
    k.label(Lend)
    k("s_endpgm")
    return k, 168, nq + n3, cfg.lds, cfg.nthreads


def gen_l4():
    cfg = GemmCfg()
    k = Kernel("l4_kernel")
    S_ = SG
    g = GemmGen(k, cfg, S_, fsets=2)
    n4 = (S // cfg.BM) * (1024 // cfg.BN)
    Lend = k.newlabel("end")
    k(f"s_cmp_ge_u32 s2, {n4}")
    k(f"s_cbranch_scc1 {Lend}")
    tile_decode(k, 1024 // cfg.BN, 0)
    load_ptr(k, S_['ws'], "ws")
    load_ptr(k, 4, "wo")
    load_ptr(k, 6, "w4")
    load_ptr(k, 58, "out")
    k("s_waitcnt lgkmcnt(0)")
    srd(k, S_['srdA'], S_['ws'], S * D * 2, WS_O)
    srd(k, S_['srdB'], 4, D * D * 2)
    srd(k, S_['srdO'], 58, S * D * 2)
    k(f"s_mov_b32 s{S_['koffA']}, 0")
    k(f"s_mov_b32 s{S_['koffB']}, 0")
    k(f"s_mov_b32 s{S_['cnt']}, {D // 64}")
    g.prologue_common()
    g.loader_begin()
    g.loader_segment(2048, 2048, S_['tm'], S_['tn'], std_adv(2048))
    k("s_barrier")
    srd(k, S_['srdA'], S_['ws'], S * 3584 * 2, WS_H3)
    srd(k, S_['srdB'], 6, 3584 * D * 2)
    k(f"s_mov_b32 s{S_['koffA']}, 0")
    k(f"s_mov_b32 s{S_['koffB']}, 0")
    k(f"s_mov_b32 s{S_['cnt']}, {3584 // 64}")
    g.loader_segment(7168, 2048, S_['tm'], S_['tn'], std_adv(2048))
    g.loader_end()
    g.prologue_addr(2048, 2048, S_['tm'], S_['tn'])
    g.zero_acc()
    g.mainloop()
    k("s_barrier")
    AP = g.tmp
    for i in range(32):
        k(f"v_cvt_pk_bf16_f32 v{AP + i}, v{g.acc + 2 * i}, v{g.acc + 2 * i + 1}")
    g.zero_acc()
    k(f"s_mov_b32 s{S_['cnt']}, {3584 // 64}")
    g.mainloop()
    srd(k, S_['srdX'], S_['ws'], S * D * 2, WS_X1)
    srd(k, S_['srdY'], S_['ws'], S * 4, WS_G)
    st = {}

    def pre(g, ctx):
        f = AP + 32
        st['xoff'] = f; st['xr'] = f + 2; st['g'] = f + 10; st['t'] = f + 12; st['og'] = f + 14
        k(f"v_add_u32 v{f}, s{ctx['row0']}, v{ctx['l31']}")
        k(f"v_lshlrev_b32 v{f + 1}, 2, v{f}")
        k(f"v_lshlrev_b32 v{f}, 11, v{f}")
        k(f"v_lshl_add_u32 v{f}, v{ctx['h']}, 3, v{f}")
        k(f"s_lshl_b32 s{S_['t0']}, s{ctx['col0']}, 1")
        k(f"v_add_u32 v{f}, s{S_['t0']}, v{f}")
        k(f"s_mov_b32 s{S_['t1']}, {32 * 2048}")
        for rb in range(cfg.MB):
            k(f"buffer_load_dword v{st['g'] + rb}, v{f + 1}, {sr(S_['srdY'], 4)}, 0 offen offset:{rb * 128}")

    def hook(g, ctx, cb, rb, a):
        xr, t = st['xr'], st['t']
        soff = "0" if rb == 0 else f"s{S_['t1']}"
        for q in range(4):
            k(f"buffer_load_dwordx2 {vr(xr + 2 * q, 2)}, v{st['xoff']}, {sr(S_['srdX'], 4)}, {soff} offen offset:{cb * 64 + q * 16}")
        for i in range(0, 16, 2):
            bf16r2(k, a + i, a + i + 1, t)
        k("s_waitcnt vmcnt(0)")
        gq = st['g'] + rb
        og = st['og']
        k(f"v_sub_f32 v{og}, 1.0, v{gq}")
        bf16r1(k, og, t)
        for q in range(4):
            for j in range(2):
                i = a + 4 * q + 2 * j
                k(f"v_lshlrev_b32 v{t}, 16, v{xr + 2 * q + j}")
                k(f"v_add_f32 v{i}, v{i}, v{t}")
                k(f"v_and_b32 v{t}, 0xffff0000, v{xr + 2 * q + j}")
                k(f"v_add_f32 v{i + 1}, v{i + 1}, v{t}")
        for i in range(0, 16, 2):
            bf16r2(k, a + i, a + i + 1, t)
        for i in range(16):
            k(f"v_mul_f32 v{a + i}, v{a + i}, v{og}")
        for i in range(0, 16, 2):
            bf16r2(k, a + i, a + i + 1, t)
        ap = AP + (a - g.acc) // 2
        for i in range(8):
            k(f"v_lshlrev_b32 v{t}, 16, v{ap + i}")
            k(f"v_mul_f32 v{t}, v{t}, v{gq}")
            k(f"v_and_b32 v{t + 1}, 0xffff0000, v{ap + i}")
            k(f"v_mul_f32 v{t + 1}, v{t + 1}, v{gq}")
            bf16r2(k, t, t + 1, og + 1)
            k(f"v_add_f32 v{a + 2 * i}, v{a + 2 * i}, v{t}")
            k(f"v_add_f32 v{a + 2 * i + 1}, v{a + 2 * i + 1}, v{t + 1}")
    epilogue_lds(g, 2048, hook=hook, pre=pre, ebase=g.fx[0])
    k.label(Lend)
    k("s_endpgm")
    return k, 168, n4, cfg.lds, cfg.nthreads


def all_kernels():
    ks = [gen.gen_l0(), gen_l1(), gen_l2(), gen_l3(), gen_l4()]
    n = int(os.environ.get("NLAUNCH", "9"))
    return ks[:n]
```

```python
import sys, os
sys.path.insert(0, os.path.dirname(os.path.abspath(__file__)))
from asmdsl import Kernel
from gemm import GemmCfg, GemmGen, vr, sr
from common import *

NAME = "gated_mix__linear_kernel_hedgehog__mixer_s_mlp__prompt"

HEADER = """; Kernarg layout for this problem (104 bytes, ptrs only, base s[0:1]):
"""
KA = dict(A_x=0, wqkv=8, w_phi=16, wo=24, B_x=32, w1=40, w2=48, w3=56, w4=64, gate_w=72, out=80, dbg=88, ws=96)

SG = dict(srdA=8, srdB=12, srdO=16, srdX=20, w=24, wm=25, wn=26, m0a=27, m0b=28, t0=29, t1=30,
          koffA=31, koffB=32, cnt=33, tm=34, tn=35, t2=36, t3=37, gc1=38, gc2=39, ws=40, srdY=44, srdZ=48,
          id=52, t4=53, t5=54, t6=55)


def kernel_text(k, vgprs, sgprs=102):
    body = k.finish()
    out = [".text", f".globl {k.name}", ".p2align 8", f".type {k.name},@function", f"{k.name}:"]
    out += ["    " + l if not l.endswith(":") else l for l in body]
    vg = (vgprs + 7) // 8 * 8
    assert vg <= 256, vg
    desc = f""".section .rodata,"a"
.p2align 6
.amdhsa_kernel {k.name}
  .amdhsa_next_free_vgpr {vg}
  .amdhsa_next_free_sgpr {sgprs}
  .amdhsa_accum_offset {vg}
  .amdhsa_group_segment_fixed_size 0
  .amdhsa_kernarg_size 104
  .amdhsa_user_sgpr_count 2
  .amdhsa_user_sgpr_kernarg_segment_ptr 1
  .amdhsa_system_sgpr_workgroup_id_x 1
.end_amdhsa_kernel"""
    return "\n".join(out), desc


def load_ptr(k, dst, name):
    k(f"s_load_dwordx2 s[{dst}:{dst + 1}], s[0:1], {KA[name]}")


def tile_decode(k, ntn, base):
    S_ = SG
    k(f"s_sub_u32 s{S_['id']}, s2, {base}")
    k(f"s_mul_hi_u32 s{S_['tm']}, s{S_['id']}, {(2**32 + ntn - 1) // ntn}")
    k(f"s_mul_i32 s{S_['t0']}, s{S_['tm']}, {ntn}")
    k(f"s_sub_u32 s{S_['tn']}, s{S_['id']}, s{S_['t0']}")


def epilogue_lds(g, ldo, hook=None, pre=None, post=None, ebase=None):
    k, c, S_ = g.k, g.cfg, SG
    assert c.NB == 2
    t = ebase if ebase is not None else g.fx[0]
    lane, l31, h, off, wa, ra = t, t + 1, t + 2, t + 3, t + 4, t + 5
    x, y = t + 6, t + 7
    pk = (t + 8 + 3) // 4 * 4
    z = pk + 8
    pa = z + 1
    free = (pa + 4 + 3) // 4 * 4
    rows = c.MB * 32
    k("s_barrier")
    k(f"v_and_b32 v{lane}, 63, v{g.vtid}")
    k(f"v_and_b32 v{l31}, 31, v{lane}")
    k(f"v_lshrrev_b32 v{h}, 5, v{lane}")
    k(f"s_mul_i32 s{S_['t2']}, s{S_['w']}, {rows * 128}")
    k(f"v_lshlrev_b32 v{wa}, 7, v{l31}")
    k(f"v_add_u32 v{wa}, s{S_['t2']}, v{wa}")
    k(f"v_and_b32 v{ra}, 7, v{l31}")
    k(f"v_lshrrev_b32 v{x}, 3, v{lane}")
    k(f"v_and_b32 v{y}, 7, v{lane}")
    k(f"v_lshlrev_b32 v{z}, 7, v{x}")
    k(f"v_lshl_add_u32 v{z}, v{y}, 4, v{z}")
    k(f"v_add_u32 v{z}, s{S_['t2']}, v{z}")
    k(f"s_mul_i32 s{S_['t0']}, s{S_['tm']}, {c.BM}")
    k(f"s_mul_i32 s{S_['t1']}, s{S_['wm']}, {c.MB * 32}")
    k(f"s_add_u32 s{S_['t0']}, s{S_['t0']}, s{S_['t1']}")
    k(f"s_mov_b32 s{S_['t4']}, s{S_['t0']}")
    k(f"v_add_u32 v{off}, s{S_['t0']}, v{x}")
    k(f"s_mov_b32 s{S_['t1']}, {ldo}")
    k(f"v_mul_lo_u32 v{off}, v{off}, s{S_['t1']}")
    k(f"v_xor_b32 v{y}, v{y}, v{x}")
    k(f"v_lshlrev_b32 v{y}, 4, v{y}")
    k(f"s_mul_i32 s{S_['t5']}, s{S_['tn']}, {c.BN}")
    k(f"s_mul_i32 s{S_['t1']}, s{S_['wn']}, {c.NB * 32}")
    k(f"s_add_u32 s{S_['t5']}, s{S_['t5']}, s{S_['t1']}")
    k(f"s_lshl_b32 s{S_['t0']}, s{S_['t5']}, 1")
    k(f"v_add3_u32 v{off}, v{off}, v{y}, s{S_['t0']}")
    for cb in range(c.NB):
        for qq in range(2):
            p = pa + cb * 2 + qq
            k(f"v_add_u32 v{p}, {cb * 4 + qq * 2}, v{h}")
            k(f"v_xor_b32 v{p}, v{p}, v{ra}")
            k(f"v_lshl_add_u32 v{p}, v{p}, 4, v{wa}")
    ctx = dict(lane=lane, l31=l31, h=h, free=free, row0=S_['t4'], col0=S_['t5'])
    if pre:
        pre(g, ctx)
    for rb in range(c.MB):
        for cb in range(c.NB):
            a = g.accr(cb, rb)
            if hook:
                hook(g, ctx, cb, rb, a)
            for q in range(4):
                k(f"v_cvt_pk_bf16_f32 v{pk + 2 * q}, v{a + 4 * q}, v{a + 4 * q + 1}")
                k(f"v_cvt_pk_bf16_f32 v{pk + 2 * q + 1}, v{a + 4 * q + 2}, v{a + 4 * q + 3}")
            for q in (0, 2):
                k(f"v_permlane32_swap_b32 v{pk + 2 * q}, v{pk + 2 * q + 2}")
                k(f"v_permlane32_swap_b32 v{pk + 2 * q + 1}, v{pk + 2 * q + 3}")
            k(f"ds_write_b128 v{pa + cb * 2}, {vr(pk, 4)} offset:{rb * 4096}")
            k(f"ds_write_b128 v{pa + cb * 2 + 1}, {vr(pk + 4, 4)} offset:{rb * 4096}")
    if post:
        post(g, ctx)
    k("s_waitcnt lgkmcnt(0)")
    n = rows // 8
    for j in range(n):
        k(f"ds_read_b128 {vr(g.acc + 4 * j, 4)}, v{z} offset:{j * 1024}")
    for j in range(n):
        k(f"s_waitcnt lgkmcnt({min(15, n - 1 - j)})")
        k(f"buffer_store_dwordx4 {vr(g.acc + 4 * j, 4)}, v{off}, {sr(S_['srdO'], 4)}, 0 offen")
        if j != n - 1:
            k(f"v_add_u32 v{off}, {8 * ldo}, v{off}")
    return free


def gelu_consts(k):
    k(f"s_mov_b32 s{SG['gc2']}, {f32hex(GELU_C2)}")


def gelu_block(k, a, n, t):
    for i in range(0, n, 2):
        bf16r2(k, a + i, a + i + 1, t)
    k(f"v_mov_b32 v{t + 2}, {f32hex(GELU_C1)}")
    for i in range(n):
        x = a + i
        k(f"v_mul_f32 v{t}, v{x}, v{x}")
        k(f"v_fma_f32 v{t}, v{t}, s{SG['gc2']}, v{t + 2}")
        k(f"v_mul_f32 v{t}, v{t}, v{x}")
        k(f"v_exp_f32 v{t}, v{t}")
        k(f"v_add_f32 v{t}, 1.0, v{t}")
        k(f"v_rcp_f32 v{t}, v{t}")
        k(f"v_mul_f32 v{x}, v{x}, v{t}")


def std_adv(ldb):
    def adv(k):
        k(f"s_add_u32 s{SG['koffA']}, s{SG['koffA']}, 128")
        k(f"s_add_u32 s{SG['koffB']}, s{SG['koffB']}, {64 * ldb}")
    return adv


def gen_l0():
    k = Kernel("l0_kernel")
    S_ = SG
    Lend = k.newlabel("end"); Lgate = k.newlabel("gate"); Lng = k.newlabel("ng")
    k("s_cmp_ge_u32 s2, 512")
    k(f"s_cbranch_scc1 {Lend}")
    load_ptr(k, S_['ws'], "ws")
    k("v_and_b32 v1, 63, v0")
    k("v_lshrrev_b32 v2, 6, v0")
    k(f"v_readfirstlane_b32 s{S_['w']}, v2")
    k("v_lshlrev_b32 v3, 4, v1")
    k("s_cmp_ge_u32 s2, 256")
    k(f"s_cbranch_scc1 {Lgate}")
    load_ptr(k, 4, "A_x")
    k("s_waitcnt lgkmcnt(0)")
    srd(k, S_['srdA'], 4, S * D * 2)
    srd(k, S_['srdO'], S_['ws'], S * D * 2, WS_XN1)
    k("s_cmp_ge_u32 s2, 4")
    k(f"s_cbranch_scc1 {Lng}")
    k(f"s_cmp_lg_u32 s{S_['w']}, 0")
    k(f"s_cbranch_scc1 {Lng}")
    srd(k, S_['srdX'], S_['ws'], 4096 + S * D * 2 + 4096, WS_HG)
    k(f"s_lshl_b32 s{S_['t0']}, s2, 11")
    k(f"s_cmp_ge_u32 s2, 2")
    k(f"s_cselect_b32 s{S_['t1']}, {S * D * 2}, 0")
    k(f"s_add_u32 s{S_['t0']}, s{S_['t0']}, s{S_['t1']}")
    for i in range(4):
        k(f"v_mov_b32 v{40 + i}, 0")
    k(f"buffer_store_dwordx4 v[40:43], v3, {sr(S_['srdX'], 4)}, s{S_['t0']} offen")
    k(f"buffer_store_dwordx4 v[40:43], v3, {sr(S_['srdX'], 4)}, s{S_['t0']} offen offset:1024")
    k.label(Lng)
    k(f"s_lshl_b32 s{S_['t0']}, s2, 3")
    k(f"s_add_u32 s{S_['t0']}, s{S_['t0']}, s{S_['w']}")
    k(f"s_lshl_b32 s{S_['t0']}, s{S_['t0']}, 11")
    k(f"buffer_load_dwordx4 v[4:7], v3, {sr(S_['srdA'], 4)}, s{S_['t0']} offen")
    k(f"buffer_load_dwordx4 v[8:11], v3, {sr(S_['srdA'], 4)}, s{S_['t0']} offen offset:1024")
    k("s_waitcnt vmcnt(0)")
    unpack8(k, 4, 16); unpack8(k, 8, 24)
    k("v_add_f32 v32, v16, v17")
    for i in range(2, 16):
        k(f"v_add_f32 v32, v32, v{16 + i}")
    allreduce(k, 32, 33)
    k(f"v_mul_f32 v32, {f32hex(1.0 / D)}, v32")
    k("v_sub_f32 v34, v16, v32")
    k("v_mul_f32 v35, v34, v34")
    for i in range(1, 16):
        k(f"v_sub_f32 v34, v{16 + i}, v32")
        k("v_fmac_f32 v35, v34, v34")
    allreduce(k, 35, 33)
    k(f"v_mul_f32 v35, {f32hex(1.0 / D)}, v35")
    bf16r2(k, 32, 35, 33)
    k(f"v_add_f32 v35, {f32hex(1e-5)}, v35")
    bf16r1(k, 35, 33)
    k("v_sqrt_f32 v35, v35")
    bf16r1(k, 35, 33)
    k("v_rcp_f32 v35, v35")
    for i in range(16):
        k(f"v_sub_f32 v{16 + i}, v{16 + i}, v32")
    for i in range(0, 16, 2):
        bf16r2(k, 16 + i, 17 + i, 33)
    for i in range(16):
        k(f"v_mul_f32 v{16 + i}, v{16 + i}, v35")
    for i in range(8):
        k(f"v_cvt_pk_bf16_f32 v{4 + i}, v{16 + 2 * i}, v{17 + 2 * i}")
    k(f"buffer_store_dwordx4 v[4:7], v3, {sr(S_['srdO'], 4)}, s{S_['t0']} offen")
    k(f"buffer_store_dwordx4 v[8:11], v3, {sr(S_['srdO'], 4)}, s{S_['t0']} offen offset:1024")
    k("s_endpgm")
    k.label(Lgate)
    load_ptr(k, 4, "A_x")
    load_ptr(k, 6, "gate_w")
    k("s_waitcnt lgkmcnt(0)")
    srd(k, S_['srdA'], 4, S * D * 2)
    srd(k, S_['srdB'], 6, D * 2)
    srd(k, S_['srdO'], S_['ws'], S * 4, WS_G)
    k(f"s_sub_u32 s{S_['t0']}, s2, 256")
    k(f"s_lshl_b32 s{S_['t0']}, s{S_['t0']}, 3")
    k(f"s_add_u32 s{S_['t0']}, s{S_['t0']}, s{S_['w']}")
    k(f"s_lshl_b32 s{S_['t1']}, s{S_['t0']}, 11")
    k(f"buffer_load_dwordx4 v[4:7], v3, {sr(S_['srdA'], 4)}, s{S_['t1']} offen")
    k(f"buffer_load_dwordx4 v[8:11], v3, {sr(S_['srdA'], 4)}, s{S_['t1']} offen offset:1024")
    k(f"buffer_load_dwordx4 v[40:43], v3, {sr(S_['srdB'], 4)}, 0 offen")
    k(f"buffer_load_dwordx4 v[44:47], v3, {sr(S_['srdB'], 4)}, 0 offen offset:1024")
    k("s_waitcnt vmcnt(0)")
    unpack8(k, 4, 16); unpack8(k, 8, 24)
    unpack8(k, 40, 48); unpack8(k, 44, 56)
    for i in range(16):
        k(f"v_mul_f32 v{16 + i}, v{16 + i}, v{48 + i}")
    for i in range(0, 16, 2):
        bf16r2(k, 16 + i, 17 + i, 33)
    k("v_add_f32 v32, v16, v17")
    for i in range(2, 16):
        k(f"v_add_f32 v32, v32, v{16 + i}")
    allreduce(k, 32, 33)
    bf16r1(k, 32, 33)
    k(f"v_mul_f32 v32, {f32hex(-LOG2E)}, v32")
    k("v_exp_f32 v32, v32")
    k("v_add_f32 v32, 1.0, v32")
    k("v_rcp_f32 v32, v32")
    bf16r1(k, 32, 33)
    k(f"s_lshl_b32 s{S_['t1']}, s{S_['t0']}, 2")
    k("v_cmp_eq_u32 vcc, 0, v1")
    k("s_and_saveexec_b64 s[56:57], vcc")
    k("v_mov_b32 v34, 0")
    k(f"buffer_store_dword v32, v34, {sr(S_['srdO'], 4)}, s{S_['t1']} offen")
    k.label(Lend)
    k("s_endpgm")
    return k, 64, 512, 0


def build(kernels, path):
    head = HEADER
    body, descs = [], []
    for kk_ in kernels:
        k, vg, grid, lds = kk_[:4]
        blk = kk_[4] if len(kk_) > 4 else 512
        head += f"; @launch kernel={k.name} grid=({grid},1,1) block=({blk},1,1) lds={lds}\n"
        b, d = kernel_text(k, vg)
        body.append(b); descs.append(d)
    txt = head + '.amdgcn_target "amdgcn-amd-amdhsa--gfx950"\n' + "\n".join(body) + "\n" + "\n".join(descs) + "\n"
    open(path, "w").write(txt)
    return txt


if __name__ == "__main__":
    out = sys.argv[1] if len(sys.argv) > 1 else "test_all.s"
    import launches
    build(launches.all_kernels(), out)
    print("wrote", out)
```

```python
from asmdsl import Kernel
import os
EXP = os.environ.get('EXP', '')

BK = 64


class GemmCfg:
    def __init__(self, WM=4, WN=2, MB=2, NB=2, stages=3, NL=int(os.environ.get('NL', '4'))):
        self.WM, self.WN, self.MB, self.NB = WM, WN, MB, NB
        self.NL = NL
        self.BM = WM * MB * 32
        self.BN = WN * NB * 32
        self.nw = WM * WN
        self.stages = stages
        self.a_bytes = self.BM * BK * 2
        self.b_bytes = BK * self.BN * 2
        self.stage_bytes = self.a_bytes + self.b_bytes
        self.lds = self.stage_bytes * stages
        self.nthreads = (self.nw + NL) * 64
        self.a_rows_per_wave = self.BM // NL
        assert self.a_rows_per_wave % 8 == 0
        self.a_dma = self.a_rows_per_wave // 8
        self.b_row_bytes = self.BN * 2
        self.b_rows_per_dma = 1024 // self.b_row_bytes
        self.b_rows_per_wave = BK // NL
        assert self.b_rows_per_wave % self.b_rows_per_dma == 0
        self.b_dma = self.b_rows_per_wave // self.b_rows_per_dma
        self.ndma = self.a_dma + self.b_dma


class Regs:
    def __init__(self, start=0):
        self.n = start

    def alloc(self, cnt, align=1):
        self.n = (self.n + align - 1) // align * align
        r = self.n
        self.n += cnt
        return r


def vr(base, cnt):
    return "v[%d:%d]" % (base, base + cnt - 1)


def sr(base, cnt):
    return "s[%d:%d]" % (base, base + cnt - 1)


class GemmGen:
    def __init__(self, k, cfg, S, fsets=4):
        self.fsets = fsets
        self.k = k
        self.cfg = cfg
        self.S = S
        c = cfg
        R = Regs(0)
        self.acc = R.alloc(c.NB * c.MB * 16, 16)
        self.fx = [R.alloc(c.MB * 4, 4) for _ in range(fsets)]
        self.fw = [R.alloc(c.NB * 4, 4) for _ in range(fsets)]
        self.ax = R.alloc(4 * c.stages)
        self.aw = R.alloc(c.NB * c.stages)
        self.vtid = R.alloc(1)
        self.tmp = R.alloc(0, 4)
        self.R = R

    def accr(self, cb, rb):
        return self.acc + (cb * self.cfg.MB + rb) * 16

    def prologue_common(self):
        k, c, S = self.k, self.cfg, self.S
        t = self.tmp
        k(f"v_mov_b32 v{self.vtid}, v0")
        k(f"v_lshrrev_b32 v{t}, 6, v0")
        k(f"v_readfirstlane_b32 s{S['w']}, v{t}")

    def loader(self, lda, ldb, s_tm, s_tn, advance):
        self.loader_begin()
        self.loader_segment(lda, ldb, s_tm, s_tn, advance)
        self.loader_end()

    def loader_begin(self):
        k, c, S = self.k, self.cfg, self.S
        t = 4
        lane = t
        self.Lcomp = k.newlabel("comp")
        k(f"s_cmp_lt_u32 s{S['w']}, {c.nw}")
        k(f"s_cbranch_scc1 {self.Lcomp}")
        Lok = k.newlabel("lok")
        k(f"s_cmp_lt_u32 s{S['w']}, {c.nw + c.NL}")
        k(f"s_cbranch_scc1 {Lok}")
        k("s_endpgm")
        k.label(Lok)
        k(f"s_sub_u32 s{S['w']}, s{S['w']}, {c.nw}")
        k(f"v_and_b32 v{lane}, 63, v0")
        k(f"s_mul_i32 s{S['m0a']}, s{S['w']}, {c.a_rows_per_wave * 128}")
        k(f"s_mul_i32 s{S['m0b']}, s{S['w']}, {c.b_rows_per_wave * c.b_row_bytes}")
        k(f"s_add_u32 s{S['m0b']}, s{S['m0b']}, {c.a_bytes}")

    def loader_end(self):
        self.k("s_endpgm")
        self.k.label(self.Lcomp)

    def loader_segment(self, lda, ldb, s_tm, s_tn, advance):
        k, c, S = self.k, self.cfg, self.S
        t = 4
        lane = t
        a, b2, d = t + 2, t + 3, t + 4
        R2 = Regs(t + 8)
        da = R2.alloc(c.a_dma)
        db = R2.alloc(c.b_dma)
        k(f"v_lshrrev_b32 v{a}, 3, v{lane}")
        k(f"v_lshrrev_b32 v{b2}, 4, v{lane}")
        k(f"v_and_b32 v{d}, 7, v{lane}")
        k(f"s_mul_i32 s{S['t0']}, s{s_tm}, {c.BM}")
        k(f"s_mul_i32 s{S['t1']}, s{S['w']}, {c.a_rows_per_wave}")
        k(f"s_add_u32 s{S['t0']}, s{S['t0']}, s{S['t1']}")
        k(f"s_mov_b32 s{S['t1']}, {lda}")
        x, y = t + 5, t + 6
        for j in range(c.a_dma):
            k(f"v_add_u32 v{x}, s{S['t0']}, v{a}")
            if j:
                k(f"v_add_u32 v{x}, {8 * j}, v{x}")
            k(f"v_mul_lo_u32 v{x}, v{x}, s{S['t1']}")
            if j & 1:
                k(f"v_or_b32 v{y}, 4, v{b2}")
                k(f"v_xor_b32 v{y}, v{y}, v{d}")
            else:
                k(f"v_xor_b32 v{y}, v{b2}, v{d}")
            k(f"v_lshlrev_b32 v{y}, 4, v{y}")
            k(f"v_add_u32 v{da + j}, v{x}, v{y}")
        cpr = c.b_row_bytes // 16
        lgc = {16: 4, 8: 3}[cpr]
        k(f"v_lshrrev_b32 v{a}, {lgc}, v{lane}")
        k(f"v_and_b32 v{d}, {cpr - 1}, v{lane}")
        if cpr == 16:
            k(f"v_lshlrev_b32 v{b2}, 2, v{a}")
        else:
            k(f"v_lshrrev_b32 v{b2}, 1, v{a}")
            k(f"v_and_b32 v{b2}, 1, v{b2}")
            k(f"v_lshlrev_b32 v{b2}, 2, v{b2}")
        k(f"v_xor_b32 v{d}, v{d}, v{b2}")
        k(f"v_lshlrev_b32 v{d}, 4, v{d}")
        k(f"s_mul_i32 s{S['t0']}, s{S['w']}, {c.b_rows_per_wave}")
        k(f"s_mul_i32 s{S['t1']}, s{s_tn}, {c.BN * 2}")
        k(f"v_add_u32 v{d}, s{S['t1']}, v{d}")
        k(f"s_mov_b32 s{S['t1']}, {ldb}")
        for j in range(c.b_dma):
            k(f"v_add_u32 v{x}, s{S['t0']}, v{a}")
            if j:
                k(f"v_add_u32 v{x}, {c.b_rows_per_dma * j}, v{x}")
            k(f"v_mul_lo_u32 v{x}, v{x}, s{S['t1']}")
            k(f"v_add_u32 v{db + j}, v{x}, v{d}")

        def dma(stage):
            if 'nodma' in EXP:
                advance(k)
                return
            base = stage * c.stage_bytes
            for j in range(c.a_dma):
                k(f"s_add_u32 m0, s{S['m0a']}, {base + j * 1024}")
                k(f"buffer_load_dwordx4 v{da + j}, {sr(S['srdA'], 4)}, s{S['koffA']} offen lds")
            for j in range(c.b_dma):
                k(f"s_add_u32 m0, s{S['m0b']}, {base + j * 1024}")
                k(f"buffer_load_dwordx4 v{db + j}, {sr(S['srdB'], 4)}, s{S['koffB']} offen lds")
            advance(k)
        nd = c.ndma
        PD = c.stages - 1
        Lloop = k.newlabel("lloop"); Ldone = k.newlabel("ldone")
        for i in range(PD):
            dma(i)
        k.label(Lloop)
        for st in range(c.stages):
            Lw0 = k.newlabel("w0"); Lw1 = k.newlabel("w1"); Lnd = k.newlabel("nd")
            k(f"s_cmp_lt_u32 s{S['cnt']}, {PD}")
            k(f"s_cbranch_scc1 {Lw0}")
            k(f"s_waitcnt vmcnt({nd * (PD - 1)})")
            k(f"s_branch {Lw1}")
            k.label(Lw0)
            k(f"s_waitcnt vmcnt(0)")
            k.label(Lw1)
            k("s_barrier")
            k(f"s_cmp_le_u32 s{S['cnt']}, {PD}")
            k(f"s_cbranch_scc1 {Lnd}")
            dma((st + PD) % c.stages)
            k.label(Lnd)
            k(f"s_sub_u32 s{S['cnt']}, s{S['cnt']}, 1")
            k(f"s_cmp_eq_u32 s{S['cnt']}, 0")
            if st != c.stages - 1:
                k(f"s_cbranch_scc1 {Ldone}")
            else:
                k(f"s_cbranch_scc0 {Lloop}")
        k.label(Ldone)

    def prologue_addr(self, lda, ldb, s_tm, s_tn):
        k, c, S = self.k, self.cfg, self.S
        t = self.tmp
        lane = t
        k(f"v_and_b32 v{lane}, 63, v{self.vtid}")
        lg = {1: 0, 2: 1, 4: 2, 8: 3}[c.WN]
        k(f"s_lshr_b32 s{S['wm']}, s{S['w']}, {lg}")
        k(f"s_and_b32 s{S['wn']}, s{S['w']}, {c.WN - 1}")
        cpr = c.b_row_bytes // 16
        l31, h, s = t + 2, t + 3, t + 4
        k(f"v_and_b32 v{l31}, 31, v{lane}")
        k(f"v_lshrrev_b32 v{h}, 5, v{lane}")
        k(f"v_lshrrev_b32 v{s}, 1, v{lane}")
        k(f"v_and_b32 v{s}, 7, v{s}")
        k(f"s_mul_i32 s{S['t0']}, s{S['wm']}, {c.MB * 32}")
        x = t + 5
        k(f"v_add_u32 v{x}, s{S['t0']}, v{l31}")
        k(f"v_lshlrev_b32 v{x}, 7, v{x}")
        for kk in range(4):
            y = t + 6
            k(f"v_add_u32 v{y}, {kk * 2}, v{h}")
            k(f"v_xor_b32 v{y}, v{y}, v{s}")
            k(f"v_lshlrev_b32 v{y}, 4, v{y}")
            k(f"v_add_u32 v{self.ax + kk}, v{x}, v{y}")
            for st in range(1, c.stages):
                k(f"v_add_u32 v{self.ax + st * 4 + kk}, {st * c.stage_bytes}, v{self.ax + kk}")
        g, r_, c_ = t + 2, t + 3, t + 4
        k(f"v_lshrrev_b32 v{g}, 4, v{lane}")
        k(f"v_and_b32 v{r_}, 15, v{lane}")
        k(f"v_lshrrev_b32 v{r_}, 2, v{r_}")
        k(f"v_and_b32 v{c_}, 3, v{lane}")
        row = t + 5
        k(f"v_lshrrev_b32 v{row}, 1, v{g}")
        k(f"v_lshlrev_b32 v{row}, 3, v{row}")
        k(f"v_add_u32 v{row}, v{row}, v{r_}")
        k(f"v_mul_u32_u24 v{row}, {c.b_row_bytes}, v{row}")
        ch = t + 6
        k(f"v_and_b32 v{ch}, 1, v{g}")
        k(f"v_lshlrev_b32 v{ch}, 1, v{ch}")
        y = t + 7
        k(f"v_lshrrev_b32 v{y}, 1, v{c_}")
        k(f"v_add_u32 v{ch}, v{ch}, v{y}")
        k(f"s_mul_i32 s{S['t0']}, s{S['wn']}, {c.NB * 4}")
        k(f"v_add_u32 v{ch}, s{S['t0']}, v{ch}")
        if cpr == 16:
            k(f"v_lshlrev_b32 v{y}, 2, v{r_}")
        else:
            k(f"v_lshrrev_b32 v{y}, 1, v{r_}")
            k(f"v_lshlrev_b32 v{y}, 2, v{y}")
        k(f"v_and_b32 v{c_}, 1, v{c_}")
        k(f"v_lshlrev_b32 v{c_}, 3, v{c_}")
        k(f"v_add_u32 v{row}, v{row}, v{c_}")
        k(f"v_add_u32 v{row}, {c.a_bytes}, v{row}")
        for cb in range(c.NB):
            z = self.aw + cb
            k(f"v_add_u32 v{z}, {cb * 4}, v{ch}")
            k(f"v_xor_b32 v{z}, v{z}, v{y}")
            k(f"v_lshlrev_b32 v{z}, 4, v{z}")
            k(f"v_add_u32 v{z}, v{z}, v{row}")
            for st in range(1, c.stages):
                k(f"v_add_u32 v{self.aw + st * c.NB + cb}, {st * c.stage_bytes}, v{z}")

    def zero_acc(self):
        c = self.cfg
        for i in range(c.NB * c.MB * 16):
            self.k(f"v_mov_b32 v{self.acc + i}, 0")
        for p in ((2, 3) if self.fsets == 4 else (1,)):
            for i in range(c.MB * 4):
                self.k(f"v_mov_b32 v{self.fx[p] + i}, 0")
            for i in range(c.NB * 4):
                self.k(f"v_mov_b32 v{self.fw[p] + i}, 0")

    def reads(self, stage, kk, p):
        k, c = self.k, self.cfg
        if 'noread' in EXP:
            return
        for rb in range(c.MB):
            k(f"ds_read_b128 {vr(self.fx[p] + rb * 4, 4)}, v{self.ax + stage * 4 + kk} offset:{rb * 4096}")
        for cb in range(c.NB):
            for j in range(2):
                off = (kk * 16 + j * 4) * c.b_row_bytes
                k(f"ds_read_b64_tr_b16 {vr(self.fw[p] + cb * 4 + j * 2, 2)}, v{self.aw + stage * c.NB + cb} offset:{off}")

    def mfmas(self, p):
        k, c = self.k, self.cfg
        if 'nomfma' in EXP:
            return
        for cb in range(c.NB):
            for rb in range(c.MB):
                a = vr(self.accr(cb, rb), 16)
                if 'm16' in EXP:
                    for hh in range(2):
                        a4 = vr(self.accr(cb, rb) + 4 * hh + 8 * (p & 1), 4)
                        k(f"v_mfma_f32_16x16x32_bf16 {a4}, {vr(self.fw[p] + cb * 4, 4)}, {vr(self.fx[p] + rb * 4, 4)}, {a4}")
                    continue
                k(f"v_mfma_f32_32x32x16_bf16 {a}, {vr(self.fw[p] + cb * 4, 4)}, {vr(self.fx[p] + rb * 4, 4)}, {a}")

    def mainloop(self):
        if self.fsets == 4:
            return self.mainloop4()
        k, c, S = self.k, self.cfg, self.S
        nrd = c.MB + 2 * c.NB
        if 'noread' in EXP:
            nrd = 0
        Lloop = k.newlabel("loop")
        Lexit = k.newlabel("exit")
        k.label(Lloop)
        for st in range(c.stages):
            k("s_waitcnt lgkmcnt(0)")
            k("s_barrier")
            self.reads(st, 0, 0)
            self.mfmas(1)
            self.reads(st, 1, 1)
            k(f"s_waitcnt lgkmcnt({nrd})")
            self.mfmas(0)
            self.reads(st, 2, 0)
            k(f"s_waitcnt lgkmcnt({nrd})")
            self.mfmas(1)
            self.reads(st, 3, 1)
            k(f"s_waitcnt lgkmcnt({nrd})")
            self.mfmas(0)
            k(f"s_sub_u32 s{S['cnt']}, s{S['cnt']}, 1")
            k(f"s_cmp_eq_u32 s{S['cnt']}, 0")
            if st != c.stages - 1:
                k(f"s_cbranch_scc1 {Lexit}")
            else:
                k(f"s_cbranch_scc0 {Lloop}")
        k.label(Lexit)
        k("s_waitcnt lgkmcnt(0)")
        self.mfmas(1)

    def mainloop4(self):
        k, c, S = self.k, self.cfg, self.S
        nrd = c.MB + 2 * c.NB
        if 'noread' in EXP:
            nrd = 0
        Lloop = k.newlabel("loop")
        Lexit = k.newlabel("exit")
        k.label(Lloop)
        for st in range(c.stages):
            k("s_waitcnt lgkmcnt(0)")
            k("s_barrier")
            self.reads(st, 0, 0)
            self.mfmas(2)
            self.reads(st, 1, 1)
            self.mfmas(3)
            self.reads(st, 2, 2)
            k(f"s_waitcnt lgkmcnt({min(15, 2 * nrd)})")
            self.mfmas(0)
            self.reads(st, 3, 3)
            k(f"s_waitcnt lgkmcnt({min(15, 2 * nrd)})")
            self.mfmas(1)
            k(f"s_sub_u32 s{S['cnt']}, s{S['cnt']}, 1")
            k(f"s_cmp_eq_u32 s{S['cnt']}, 0")
            if st != c.stages - 1:
                k(f"s_cbranch_scc1 {Lexit}")
            else:
                k(f"s_cbranch_scc0 {Lloop}")
        k.label(Lexit)
        k(f"s_waitcnt lgkmcnt({nrd})")
        self.mfmas(2)
        k("s_waitcnt lgkmcnt(0)")
        self.mfmas(3)
```

```python
import os
from gen import *
import gen


def gemm_setup(k, g, cfg, a_ptr, a_off, a_bytes, b_name, b_bytes, o_off, o_bytes, lda, ldb, ksteps, koffA0=0, adv=None):
    S_ = SG
    load_ptr(k, S_['ws'], "ws")
    load_ptr(k, 6, b_name)
    if a_ptr != "ws":
        load_ptr(k, 4, a_ptr)
    k("s_waitcnt lgkmcnt(0)")
    if a_ptr == "ws":
        srd(k, S_['srdA'], S_['ws'], a_bytes, a_off)
    else:
        srd(k, S_['srdA'], 4, a_bytes)
    srd(k, S_['srdB'], 6, b_bytes)
    if o_off is not None:
        srd(k, S_['srdO'], S_['ws'], o_bytes, o_off)
    k(f"s_mov_b32 s{S_['koffA']}, {koffA0}")
    k(f"s_mov_b32 s{S_['koffB']}, 0")
    k(f"s_mov_b32 s{S_['cnt']}, {ksteps}")
    g.prologue_common()
    g.loader(lda, ldb, S_['tm'], S_['tn'], adv or std_adv(ldb))
    g.prologue_addr(lda, ldb, S_['tm'], S_['tn'])
    g.zero_acc()


def gen_l1():
    cfg = GemmCfg()
    k = Kernel("l1_kernel")
    S_ = SG
    g = GemmGen(k, cfg, S_)
    nq = (S // cfg.BM) * (3072 // cfg.BN)
    n1 = (S // cfg.BM) * (1024 // cfg.BN)
    Lend = k.newlabel("end"); Lw1 = k.newlabel("w1")
    k(f"s_cmp_ge_u32 s2, {nq + n1}")
    k(f"s_cbranch_scc1 {Lend}")
    xcd_decode(k)
    xcd_tile(k, 2, 4, 8)
    k(f"s_cmp_ge_u32 s{S_['tn']}, 24")
    k(f"s_cbranch_scc1 {Lw1}")
    gemm_setup(k, g, cfg, "A_x", 0, S * D * 2, "wqkv", D * 3072 * 2, WS_QKV, S * 3072 * 2, 2048, 6144, D // 64)
    g.mainloop()
    epilogue_lds(g, 6144)
    k("s_endpgm")
    k.label(Lw1)
    k(f"s_sub_u32 s{S_['tn']}, s{S_['tn']}, 24")
    gemm_setup(k, g, cfg, "ws", WS_XN1, S * D * 2, "w1", D * D * 2, WS_H, S * D * 2, 2048, 2048, D // 64)
    gelu_consts(k)
    g.mainloop()

    def hook(g, ctx, cb, rb, a):
        gelu_block(k, a, 16, ctx['free'])
    free = epilogue_lds(g, 2048, hook=hook)
    k.label(Lend)
    k("s_endpgm")
    return k, g.tmp + 8, nq + n1, cfg.lds, cfg.nthreads


def w2_role(k, g, cfg, base):
    S_ = SG
    tile_decode(k, 1024 // cfg.BN, base)
    sh = [-1, 1, -2, 2]
    def adv(k):
        k(f"s_add_u32 s{S_['koffA']}, s{S_['koffA']}, 128")
        k(f"s_add_u32 s{S_['koffB']}, s{S_['koffB']}, {64 * 2048}")
        k(f"s_add_u32 s{S_['t6']}, s{S_['t6']}, 1")
        for q in range(1, 4):
            d = (sh[q] - sh[q - 1]) * 2048
            k(f"s_cmp_eq_u32 s{S_['t6']}, {4 * q}")
            k(f"s_cselect_b32 s{S_['t3']}, {d & 0xffffffff}, 0")
            k(f"s_add_u32 s{S_['koffA']}, s{S_['koffA']}, s{S_['t3']}")
    k(f"s_mov_b32 s{S_['t6']}, 0")
    gemm_setup(k, g, cfg, "ws", WS_HG, 4096 + S * D * 2 + 4096, "w2", D * D * 2, WS_X1, S * D * 2, 2048, 2048, D // 64,
               koffA0=(2 + sh[0]) * 2048, adv=adv)
    load_ptr(k, 4, "A_x")
    k("s_waitcnt lgkmcnt(0)")
    srd(k, S_['srdX'], 4, S * D * 2)
    srd(k, S_['srdY'], S_['ws'], S * 128, WS_ST)
    g.mainloop()

    st = {}
    def pre(g, ctx):
        f = ctx['free']
        st['xoff'] = f; st['xr'] = f + 4; st['s1'] = f + 12; st['s2'] = f + 13; st['t'] = f + 14; st['so'] = f + 15
        k(f"v_add_u32 v{f}, s{ctx['row0']}, v{ctx['l31']}")
        k(f"v_lshlrev_b32 v{f}, 11, v{f}")
        k(f"v_lshl_add_u32 v{f}, v{ctx['h']}, 3, v{f}")
        k(f"s_lshl_b32 s{S_['t0']}, s{ctx['col0']}, 1")
        k(f"v_add_u32 v{f}, s{S_['t0']}, v{f}")
        k(f"s_mov_b32 s{S_['t1']}, {32 * 2048}")
        so = st['so']
        k(f"v_add_u32 v{so}, s{ctx['row0']}, v{ctx['l31']}")
        k(f"v_lshlrev_b32 v{so}, 7, v{so}")
        k(f"s_lshr_b32 s{S_['t0']}, s{ctx['col0']}, 3")
        k(f"v_add_u32 v{so}, s{S_['t0']}, v{so}")

    def hook(g, ctx, cb, rb, a):
        xr, t = st['xr'], st['t']
        soff = "0" if rb == 0 else f"s{S_['t1']}"
        for q in range(4):
            k(f"buffer_load_dwordx2 {vr(xr + 2 * q, 2)}, v{st['xoff']}, {sr(S_['srdX'], 4)}, {soff} offen offset:{cb * 64 + q * 16}")
        if cb == 0:
            k(f"v_mov_b32 v{st['s1']}, 0")
            k(f"v_mov_b32 v{st['s2']}, 0")
        for i in range(0, 16, 2):
            bf16r2(k, a + i, a + i + 1, t)
        k("s_waitcnt vmcnt(0)")
        for q in range(4):
            for j in range(2):
                i = a + 4 * q + 2 * j
                k(f"v_lshlrev_b32 v{t}, 16, v{xr + 2 * q + j}")
                k(f"v_add_f32 v{i}, v{i}, v{t}")
                k(f"v_and_b32 v{t}, 0xffff0000, v{xr + 2 * q + j}")
                k(f"v_add_f32 v{i + 1}, v{i + 1}, v{t}")
        for i in range(0, 16, 2):
            bf16r2(k, a + i, a + i + 1, t)
        for i in range(16):
            k(f"v_add_f32 v{st['s1']}, v{st['s1']}, v{a + i}")
            k(f"v_fmac_f32 v{st['s2']}, v{a + i}, v{a + i}")
        if cb == cfg.NB - 1:
            half_reduce32(k, st['s1'], t, "add")
            half_reduce32(k, st['s2'], t, "add")
            k(f"v_cmp_gt_u32 vcc, 32, v{ctx['lane']}")
            k("s_and_saveexec_b64 s[56:57], vcc")
            so = st['so']
            k(f"buffer_store_dwordx2 {vr(st['s1'], 2)}, v{so}, {sr(S_['srdY'], 4)}, 0 offen")
            k("s_mov_b64 exec, s[56:57]")
            k(f"v_add_u32 v{so}, 4096, v{so}")
    epilogue_lds(g, 2048, hook=hook, pre=pre)
    k("s_endpgm")


def cs3_role(k, base):
    S_ = SG
    load_ptr(k, S_['ws'], "ws")
    load_ptr(k, 6, "w3")
    k("s_waitcnt lgkmcnt(0)")
    srd(k, S_['srdB'], 6, D * 3584 * 2)
    srd(k, S_['srdO'], S_['ws'], 3584 * 4, WS_CS3)
    k(f"s_sub_u32 s{S_['id']}, s{S_['jj']}, {base}")
    k(f"s_lshl_b32 s{S_['id']}, s{S_['id']}, 3")
    k(f"s_add_u32 s{S_['id']}, s{S_['id']}, s{S_['xx']}")
    k("v_cmp_gt_u32 vcc, 512, v0")
    k("s_and_saveexec_b64 s[56:57], vcc")
    Lx = k.newlabel("csx")
    k(f"s_cbranch_execz {Lx}")
    k("v_and_b32 v1, 15, v0")
    k("v_lshrrev_b32 v2, 4, v0")
    k(f"s_mov_b32 s{S_['t0']}, {32 * 7168}")
    k(f"v_mul_lo_u32 v3, v2, s{S_['t0']}")
    k("v_lshl_add_u32 v3, v1, 4, v3")
    k(f"s_lshl_b32 s{S_['t1']}, s{S_['id']}, 8")
    for i in range(8):
        k(f"v_mov_b32 v{8 + i}, 0")
    for r in range(0, 32, 4):
        for j in range(4):
            k(f"buffer_load_dwordx4 {vr(16 + 4 * j, 4)}, v3, {sr(S_['srdB'], 4)}, s{S_['t1']} offen")
            k(f"v_add_u32 v3, 7168, v3")
        k("s_waitcnt vmcnt(0)")
        for j in range(4):
            unpack8(k, 16 + 4 * j, 32)
            for i in range(8):
                k(f"v_add_f32 v{8 + i}, v{8 + i}, v{32 + i}")
    k("v_lshlrev_b32 v4, 9, v2")
    k("v_lshl_add_u32 v4, v1, 5, v4")
    k("ds_write_b128 v4, v[8:11]")
    k("ds_write_b128 v4, v[12:15] offset:16")
    k("s_waitcnt lgkmcnt(0)")
    k.label(Lx)
    k("s_mov_b64 exec, s[56:57]")
    k("s_barrier")
    k("v_cmp_gt_u32 vcc, 128, v0")
    k("s_and_saveexec_b64 s[56:57], vcc")
    Ly = k.newlabel("csy")
    k(f"s_cbranch_execz {Ly}")
    k("v_lshlrev_b32 v4, 2, v0")
    k("v_mov_b32 v5, 0")
    for r in range(32):
        k(f"ds_read_b32 v6, v4 offset:{r * 512}")
        k("s_waitcnt lgkmcnt(0)")
        k("v_add_f32 v5, v5, v6")
    k(f"s_lshl_b32 s{S_['t1']}, s{S_['id']}, 9")
    k(f"buffer_store_dword v5, v4, {sr(S_['srdO'], 4)}, s{S_['t1']} offen")
    k.label(Ly)
    k("s_endpgm")


KVP_BYTES = 8192 + 256


def tr_addr_small(k, lane, dst, t, row_bytes, colblk_bytes=0):
    g, r_, c_ = t, t + 1, t + 2
    k(f"v_lshrrev_b32 v{g}, 4, v{lane}")
    k(f"v_and_b32 v{r_}, 15, v{lane}")
    k(f"v_lshrrev_b32 v{r_}, 2, v{r_}")
    k(f"v_and_b32 v{c_}, 3, v{lane}")
    k(f"v_lshrrev_b32 v{dst}, 1, v{g}")
    k(f"v_lshlrev_b32 v{dst}, 3, v{dst}")
    k(f"v_add_u32 v{dst}, v{dst}, v{r_}")
    k(f"v_mul_u32_u24 v{dst}, {row_bytes}, v{dst}")
    k(f"v_and_b32 v{g}, 1, v{g}")
    k(f"v_lshl_add_u32 v{dst}, v{g}, 5, v{dst}")
    k(f"v_lshl_add_u32 v{dst}, v{c_}, 3, v{dst}")


def phi_softmax(k, T, P, N, t):
    mx, mn, t0, t1 = t, t + 1, t + 2, t + 3
    k(f"v_max3_f32 v{mx}, v{T}, v{T + 1}, v{T + 2}")
    k(f"v_min3_f32 v{mn}, v{T}, v{T + 1}, v{T + 2}")
    for i in range(3, 15, 2):
        k(f"v_max3_f32 v{mx}, v{mx}, v{T + i}, v{T + i + 1}")
        k(f"v_min3_f32 v{mn}, v{mn}, v{T + i}, v{T + i + 1}")
    k(f"v_max_f32 v{mx}, v{mx}, v{T + 15}")
    k(f"v_min_f32 v{mn}, v{mn}, v{T + 15}")
    half_reduce32(k, mx, t0, "max")
    half_reduce32(k, mn, t0, "min")
    for i in range(16):
        k(f"v_sub_f32 v{N + i}, v{mn}, v{T + i}")
        k(f"v_mul_f32 v{N + i}, {f32hex(LOG2E)}, v{N + i}")
        k(f"v_exp_f32 v{N + i}, v{N + i}")
        k(f"v_sub_f32 v{P + i}, v{T + i}, v{mx}")
        k(f"v_mul_f32 v{P + i}, {f32hex(LOG2E)}, v{P + i}")
        k(f"v_exp_f32 v{P + i}, v{P + i}")
    k(f"v_add_f32 v{mx}, v{P}, v{P + 1}")
    k(f"v_add_f32 v{mn}, v{N}, v{N + 1}")
    for i in range(2, 16):
        k(f"v_add_f32 v{mx}, v{mx}, v{P + i}")
        k(f"v_add_f32 v{mn}, v{mn}, v{N + i}")
    half_reduce32(k, mx, t0, "add")
    half_reduce32(k, mn, t0, "add")
    k(f"v_rcp_f32 v{mx}, v{mx}")
    k(f"v_rcp_f32 v{mn}, v{mn}")
    for i in range(16):
        k(f"v_mul_f32 v{P + i}, v{P + i}, v{mx}")
        k(f"v_mul_f32 v{N + i}, v{N + i}, v{mn}")


def kside_role(k, base):
    S_ = SG
    Lx = k.newlabel("ksx")
    load_ptr(k, S_['ws'], "ws")
    load_ptr(k, 6, "w_phi")
    k("v_lshrrev_b32 v1, 6, v0")
    k(f"v_readfirstlane_b32 s{S_['w']}, v1")
    k(f"s_cmp_ge_u32 s{S_['w']}, 8")
    k(f"s_cbranch_scc1 {Lx}")
    k(f"s_sub_u32 s{S_['id']}, s{S_['jj']}, {base}")
    k(f"s_lshl_b32 s{S_['id']}, s{S_['id']}, 3")
    k(f"s_add_u32 s{S_['id']}, s{S_['id']}, s{S_['xx']}")
    k(f"s_mov_b32 s{S_['t5']}, s{S_['id']}")
    k(f"s_and_b32 s{S_['t6']}, s{S_['id']}, 1")
    k(f"s_lshr_b32 s{S_['id']}, s{S_['id']}, 1")
    k("s_waitcnt lgkmcnt(0)")
    srd(k, S_['srdA'], S_['ws'], S * 3072 * 2, WS_QKV)
    srd(k, S_['srdB'], 6, 32 * 32 * 32 * 2)
    srd(k, S_['srdO'], S_['ws'], 64 * KVP_BYTES, WS_KV)
    lane = 2
    k(f"v_and_b32 v{lane}, 63, v0")
    WREG = 4096
    WSZ = 4096 + 8192
    k("v_lshlrev_b32 v3, 4, v2")
    Lnw = k.newlabel("nw")
    k(f"s_cmp_lg_u32 s{S_['w']}, 0")
    k(f"s_cbranch_scc1 {Lnw}")
    k(f"s_lshl_b32 s{S_['t0']}, s{S_['id']}, 11")
    k("s_mov_b32 m0, 0")
    k(f"buffer_load_dwordx4 v3, {sr(S_['srdB'], 4)}, s{S_['t0']} offen lds")
    k(f"s_add_u32 s{S_['t0']}, s{S_['t0']}, 1024")
    k("s_mov_b32 m0, 1024")
    k(f"buffer_load_dwordx4 v3, {sr(S_['srdB'], 4)}, s{S_['t0']} offen lds")
    k("s_waitcnt vmcnt(0)")
    k.label(Lnw)
    a_w, a_phi, a_v = 4, 5, 6
    tr_addr_small(k, lane, a_w, 10, 64)
    tr_addr_small(k, lane, a_phi, 10, 128)
    tr_addr_small(k, lane, a_v, 10, 64)
    k(f"s_mul_i32 s{S_['t2']}, s{S_['w']}, {WSZ}")
    k(f"s_add_u32 s{S_['t2']}, s{S_['t2']}, {WREG}")
    k(f"v_add_u32 v{a_phi}, s{S_['t2']}, v{a_phi}")
    k(f"v_add_u32 v{a_v}, s{S_['t2']}, v{a_v}")
    k(f"v_add_u32 v{a_v}, 4096, v{a_v}")
    l31, h = 7, 8
    k(f"v_and_b32 v{l31}, 31, v{lane}")
    k(f"v_lshrrev_b32 v{h}, 5, v{lane}")
    k(f"s_lshl_b32 s{S_['t0']}, s{S_['t6']}, 10")
    k(f"s_lshl_b32 s{S_['t1']}, s{S_['w']}, 7")
    k(f"s_add_u32 s{S_['t4']}, s{S_['t0']}, s{S_['t1']}")
    koff = 9
    k(f"v_add_u32 v{koff}, s{S_['t4']}, v{l31}")
    k(f"s_mov_b32 s{S_['t1']}, 6144")
    k(f"v_mul_lo_u32 v{koff}, v{koff}, s{S_['t1']}")
    k(f"v_lshl_add_u32 v{koff}, v{h}, 4, v{koff}")
    k(f"s_lshl_b32 s{S_['t0']}, s{S_['id']}, 6")
    k(f"s_add_u32 s{S_['t0']}, s{S_['t0']}, 2048")
    k(f"v_add_u32 v{koff}, s{S_['t0']}, v{koff}")
    voff = 10
    k(f"v_lshrrev_b32 v{voff}, 2, v{lane}")
    k(f"v_add_u32 v{voff}, s{S_['t4']}, v{voff}")
    k(f"v_mul_lo_u32 v{voff}, v{voff}, s{S_['t1']}")
    k(f"v_and_b32 v11, 3, v{lane}")
    k(f"v_lshl_add_u32 v{voff}, v11, 4, v{voff}")
    k(f"s_add_u32 s{S_['t0']}, s{S_['t0']}, 2048")
    k(f"v_add_u32 v{voff}, s{S_['t0']}, v{voff}")
    pw = 11
    k(f"v_lshlrev_b32 v{pw}, 7, v{l31}")
    k(f"v_lshl_add_u32 v{pw}, v{h}, 3, v{pw}")
    k(f"v_add_u32 v{pw}, s{S_['t2']}, v{pw}")
    ones = 24
    for i in range(4):
        k(f"v_mov_b32 v{ones + i}, 0x3f803f80")
    KF = 28
    for b in range(4):
        k(f"buffer_load_dwordx4 {vr(KF + 8 * b, 4)}, v{koff}, {sr(S_['srdA'], 4)}, 0 offen")
        k(f"buffer_load_dwordx4 {vr(KF + 8 * b + 4, 4)}, v{koff}, {sr(S_['srdA'], 4)}, 0 offen offset:32")
        if b != 3:
            k(f"v_add_u32 v{koff}, {32 * 6144}, v{koff}")
    for b in range(8):
        k(f"s_add_u32 m0, s{S_['t2']}, {4096 + 1024 * b}")
        k(f"buffer_load_dwordx4 v{voff}, {sr(S_['srdA'], 4)}, 0 offen lds")
        if b != 7:
            k(f"v_add_u32 v{voff}, {16 * 6144}, v{voff}")
    T, N, TMP = 60, 76, 92
    P = T
    PF, VF = 68, 84
    AKV, AZ = 96, 128
    for i in range(64):
        k(f"v_mov_b32 v{AKV + i}, 0")
    k("s_barrier")
    for kk in range(2):
        for j in range(2):
            k(f"ds_read_b64_tr_b16 {vr(16 + kk * 4 + j * 2, 2)}, v{a_w} offset:{(kk * 16 + j * 4) * 64}")
    k("s_waitcnt vmcnt(0) lgkmcnt(0)")
    for b in range(4):
        k(f"v_mfma_f32_32x32x16_bf16 {vr(T, 16)}, {vr(16, 4)}, {vr(KF + 8 * b, 4)}, 0")
        k(f"v_mfma_f32_32x32x16_bf16 {vr(T, 16)}, {vr(20, 4)}, {vr(KF + 8 * b + 4, 4)}, {vr(T, 16)}")
        for i in range(0, 16, 2):
            bf16r2(k, T + i, T + i + 1, TMP)
        phi_softmax(k, T, P, N, TMP)
        for i in range(8):
            k(f"v_cvt_pk_bf16_f32 v{P + i}, v{P + 2 * i}, v{P + 2 * i + 1}")
            k(f"v_cvt_pk_bf16_f32 v{N + i}, v{N + 2 * i}, v{N + 2 * i + 1}")
        for q in range(4):
            k(f"ds_write_b64 v{pw}, {vr(P + 2 * q, 2)} offset:{q * 16}")
            k(f"ds_write_b64 v{pw}, {vr(N + 2 * q, 2)} offset:{64 + q * 16}")
        k("s_waitcnt lgkmcnt(0)")
        for kk in range(2):
            for fb in range(2):
                for j in range(2):
                    k(f"ds_read_b64_tr_b16 {vr(PF + fb * 4 + j * 2, 2)}, v{a_phi} offset:{(kk * 16 + j * 4) * 128 + fb * 64}")
            for j in range(2):
                k(f"ds_read_b64_tr_b16 {vr(VF + j * 2, 2)}, v{a_v} offset:{b * 2048 + (kk * 16 + j * 4) * 64}")
            k("s_waitcnt lgkmcnt(0)")
            for fb in range(2):
                k(f"v_mfma_f32_32x32x16_bf16 {vr(AKV + fb * 16, 16)}, {vr(PF + fb * 4, 4)}, {vr(VF, 4)}, {vr(AKV + fb * 16, 16)}")
                k(f"v_mfma_f32_32x32x16_bf16 {vr(AZ + fb * 16, 16)}, {vr(PF + fb * 4, 4)}, {vr(ones, 4)}, {vr(AZ + fb * 16, 16)}")
    k("s_barrier")
    RED, ZRED = 4096, 4096 + 65536
    ra = 4
    k(f"v_lshlrev_b32 v{ra}, 2, v{l31}")
    k(f"v_lshl_add_u32 v{ra}, v{h}, 9, v{ra}")
    k(f"s_lshl_b32 s{S_['t0']}, s{S_['w']}, 13")
    k(f"v_add_u32 v{ra}, s{S_['t0']}, v{ra}")
    k(f"v_add_u32 v{ra}, {RED}, v{ra}")
    for fb in range(2):
        for v in range(16):
            F = fb * 32 + (v & 3) + 8 * (v >> 2)
            k(f"ds_write_b32 v{ra}, v{AKV + fb * 16 + v} offset:{F * 128}")
    za = 5
    k(f"v_lshlrev_b32 v{za}, 4, v{h}")
    k(f"s_lshl_b32 s{S_['t0']}, s{S_['w']}, 8")
    k(f"v_add_u32 v{za}, s{S_['t0']}, v{za}")
    k(f"v_add_u32 v{za}, {ZRED}, v{za}")
    k(f"v_cmp_eq_u32 vcc, 0, v{l31}")
    k("s_and_saveexec_b64 s[56:57], vcc")
    for fb in range(2):
        for v in range(16):
            F = fb * 32 + (v & 3) + 8 * (v >> 2)
            k(f"ds_write_b32 v{za}, v{AZ + fb * 16 + v} offset:{F * 4}")
    k("s_mov_b64 exec, s[56:57]")
    k("s_waitcnt lgkmcnt(0)")
    k("s_barrier")
    jj, hh, dd, hf = 6, 7, 8, 9
    k(f"v_lshrrev_b32 v{jj}, 7, v0")
    k(f"v_bfe_u32 v{hh}, v0, 6, 1")
    k(f"v_bfe_u32 v{dd}, v0, 1, 5")
    k(f"v_and_b32 v{hf}, 1, v0")
    F0 = 10
    k(f"v_lshlrev_b32 v{F0}, 4, v{jj}")
    k(f"v_lshl_add_u32 v{F0}, v{hf}, 3, v{F0}")
    k(f"v_lshl_add_u32 v{F0}, v{hh}, 2, v{F0}")
    ad = 11
    k(f"v_lshlrev_b32 v{ad}, 7, v{F0}")
    k(f"v_lshl_add_u32 v{ad}, v{dd}, 2, v{ad}")
    k(f"v_add_u32 v{ad}, {RED}, v{ad}")
    for i in range(4):
        k(f"v_mov_b32 v{12 + i}, 0")
    for w in range(8):
        for i in range(4):
            k(f"ds_read_b32 v{16 + i}, v{ad} offset:{i * 128}")
        k(f"v_add_u32 v{ad}, 8192, v{ad}")
        k("s_waitcnt lgkmcnt(0)")
        for i in range(4):
            k(f"v_add_f32 v{12 + i}, v{12 + i}, v{16 + i}")
    so = 22
    k(f"v_lshrrev_b32 v{so}, 6, v0")
    k(f"v_lshlrev_b32 v{so}, 10, v{so}")
    k(f"v_lshl_add_u32 v{so}, v{dd}, 5, v{so}")
    k(f"v_lshl_add_u32 v{so}, v{hf}, 4, v{so}")
    k(f"s_mul_i32 s{S_['t0']}, s{S_['t5']}, {KVP_BYTES}")
    k(f"buffer_store_dwordx4 v[12:15], v{so}, {sr(S_['srdO'], 4)}, s{S_['t0']} offen")
    k("v_cmp_gt_u32 vcc, 64, v0")
    k("s_and_saveexec_b64 s[56:57], vcc")
    Lz = k.newlabel("ksz")
    k(f"s_cbranch_execz {Lz}")
    k("v_lshlrev_b32 v11, 2, v0")
    k(f"v_add_u32 v11, {ZRED}, v11")
    k("v_mov_b32 v12, 0")
    for w in range(8):
        k(f"ds_read_b32 v16, v11 offset:{w * 256}")
        k("s_waitcnt lgkmcnt(0)")
        k("v_add_f32 v12, v12, v16")
    k("v_lshrrev_b32 v13, 4, v0")
    k("v_bfe_u32 v14, v0, 2, 1")
    k("v_lshl_add_u32 v13, v13, 1, v14")
    k("v_lshlrev_b32 v13, 3, v13")
    k("v_bfe_u32 v14, v0, 3, 1")
    k("v_lshl_add_u32 v13, v14, 2, v13")
    k("v_and_b32 v14, 3, v0")
    k("v_add_u32 v13, v13, v14")
    k("v_lshlrev_b32 v13, 2, v13")
    k(f"s_add_u32 s{S_['t0']}, s{S_['t0']}, 8192")
    k(f"buffer_store_dword v12, v13, {sr(S_['srdO'], 4)}, s{S_['t0']} offen")
    k.label(Lz)
    k.label(Lx)
    k("s_endpgm")


def gen_l2():
    cfg = GemmCfg(2, 2, 2, 2, 3)
    k = Kernel("l2_kernel")
    S_ = SG
    g = GemmGen(k, cfg, S_, fsets=2)
    Lend = k.newlabel("end"); Lks = k.newlabel("ks"); Lcs = k.newlabel("cs")
    k(f"s_cmp_ge_u32 s2, {28 * 8}")
    k(f"s_cbranch_scc1 {Lend}")
    xcd_decode(k)
    k(f"s_cmp_ge_u32 s{S_['jj']}, 24")
    k(f"s_cbranch_scc1 {Lcs}")
    k(f"s_cmp_ge_u32 s{S_['jj']}, 16")
    k(f"s_cbranch_scc1 {Lks}")
    only = os.environ.get("ONLY", "")
    if only and 'w2' not in only: k("s_endpgm")
    w2_role(k, g, cfg, 0)
    k.label(Lks)
    if only and 'ks' not in only: k("s_endpgm")
    kside_role(k, 16)
    k.label(Lcs)
    if only and 'cs' not in only: k("s_endpgm")
    k(f"s_cmp_ge_u32 s2, {24 * 8 + 28}")
    k(f"s_cbranch_scc1 {Lend}")
    cs3_role(k, 24)
    k.label(Lend)
    k("s_endpgm")
    return k, 168, 28 * 8, 147456, 768


def w3_role(k, g, cfg, base):
    S_ = SG
    tile_decode(k, 3584 // cfg.BN, base)
    gemm_setup(k, g, cfg, "ws", WS_X1, S * D * 2, "w3", D * 3584 * 2, WS_H3, S * 3584 * 2, 2048, 7168, D // 64)
    gelu_consts(k)
    srd(k, S_['srdX'], S_['ws'], S * 128, WS_ST)
    srd(k, S_['srdY'], S_['ws'], 3584 * 4, WS_CS3)
    g.mainloop()
    st = {}

    def pre(g, ctx):
        f = ctx['free']
        st['cs'] = f; st['mb'] = f + 32; st['ri'] = f + 34; st['t'] = f + 36; st['ld'] = f + 40
        o = st['t']
        k(f"v_lshlrev_b32 v{o}, 4, v{ctx['h']}")
        k(f"s_lshl_b32 s{S_['t0']}, s{ctx['col0']}, 2")
        k(f"v_add_u32 v{o}, s{S_['t0']}, v{o}")
        for cb in range(2):
            for q in range(4):
                k(f"buffer_load_dwordx4 {vr(f + (cb * 4 + q) * 4, 4)}, v{o}, {sr(S_['srdY'], 4)}, 0 offen offset:{cb * 128 + q * 32}")
        so = st['t'] + 1
        k(f"v_add_u32 v{so}, s{ctx['row0']}, v{ctx['l31']}")
        k(f"v_lshlrev_b32 v{so}, 7, v{so}")
        for rb in range(cfg.MB):
            ld = st['ld']
            for j in range(8):
                k(f"buffer_load_dwordx4 {vr(ld + 4 * j, 4)}, v{so}, {sr(S_['srdX'], 4)}, 0 offen offset:{j * 16}")
            k("s_waitcnt vmcnt(0)")
            s1, s2 = st['mb'] + rb, st['ri'] + rb
            k(f"v_add_f32 v{s1}, v{ld}, v{ld + 2}")
            k(f"v_add_f32 v{s2}, v{ld + 1}, v{ld + 3}")
            for j in range(2, 16):
                k(f"v_add_f32 v{s1}, v{s1}, v{ld + 2 * j}")
                k(f"v_add_f32 v{s2}, v{s2}, v{ld + 2 * j + 1}")
            k(f"v_mul_f32 v{s1}, {f32hex(1.0 / D)}, v{s1}")
            k(f"v_mul_f32 v{s2}, {f32hex(1.0 / D)}, v{s2}")
            tt = st['t'] + 2
            k(f"v_fma_f32 v{s2}, -v{s1}, v{s1}, v{s2}")
            k(f"v_max_f32 v{s2}, 0, v{s2}")
            bf16r2(k, s1, s2, tt)
            k(f"v_add_f32 v{s2}, {f32hex(1e-5)}, v{s2}")
            bf16r1(k, s2, tt)
            k(f"v_sqrt_f32 v{s2}, v{s2}")
            bf16r1(k, s2, tt)
            k(f"v_rcp_f32 v{s2}, v{s2}")
            if rb != cfg.MB - 1:
                k(f"v_add_u32 v{so}, 4096, v{so}")

    def hook(g, ctx, cb, rb, a):
        cs = st['cs'] + cb * 16
        for i in range(16):
            k(f"v_fma_f32 v{a + i}, -v{st['mb'] + rb}, v{cs + i}, v{a + i}")
            k(f"v_mul_f32 v{a + i}, v{a + i}, v{st['ri'] + rb}")
        gelu_block(k, a, 16, st['t'])
    epilogue_lds(g, 7168, hook=hook, pre=pre)
    k("s_endpgm")


def qside_role(k, base):
    S_ = SG
    Lx = k.newlabel("qsx")
    load_ptr(k, S_['ws'], "ws")
    load_ptr(k, 6, "w_phi")
    k("v_lshrrev_b32 v1, 6, v0")
    k(f"v_readfirstlane_b32 s{S_['w']}, v1")
    k(f"s_cmp_ge_u32 s{S_['w']}, 8")
    k(f"s_cbranch_scc1 {Lx}")
    k(f"s_sub_u32 s{S_['id']}, s2, {base}")
    k("s_waitcnt lgkmcnt(0)")
    srd(k, S_['srdA'], S_['ws'], S * 3072 * 2, WS_QKV)
    srd(k, S_['srdB'], 6, 32 * 32 * 32 * 2)
    srd(k, S_['srdO'], S_['ws'], S * D * 2, WS_O)
    srd(k, S_['srdX'], S_['ws'], 64 * KVP_BYTES, WS_KV)
    lane = 2
    k(f"v_and_b32 v{lane}, 63, v0")
    k("v_lshlrev_b32 v3, 4, v2")
    Lnw = k.newlabel("nw")
    k(f"s_cmp_lg_u32 s{S_['w']}, 0")
    k(f"s_cbranch_scc1 {Lnw}")
    k(f"s_lshl_b32 s{S_['t0']}, s{S_['id']}, 11")
    k("s_mov_b32 m0, 0")
    k(f"buffer_load_dwordx4 v3, {sr(S_['srdB'], 4)}, s{S_['t0']} offen lds")
    k(f"s_add_u32 s{S_['t0']}, s{S_['t0']}, 1024")
    k("s_mov_b32 m0, 1024")
    k(f"buffer_load_dwordx4 v3, {sr(S_['srdB'], 4)}, s{S_['t0']} offen lds")
    k("s_waitcnt vmcnt(0)")
    k.label(Lnw)
    k("s_barrier")
    a_w = 4
    tr_addr_small(k, lane, a_w, 10, 64)
    for kk in range(2):
        for j in range(2):
            k(f"ds_read_b64_tr_b16 {vr(16 + kk * 4 + j * 2, 2)}, v{a_w} offset:{(kk * 16 + j * 4) * 64}")
    l31, h = 7, 8
    k(f"v_and_b32 v{l31}, 31, v{lane}")
    k(f"v_lshrrev_b32 v{h}, 5, v{lane}")
    koff = 9
    k(f"s_lshl_b32 s{S_['t0']}, s{S_['w']}, 8")
    k(f"v_add_u32 v{koff}, s{S_['t0']}, v{l31}")
    k(f"s_mov_b32 s{S_['t1']}, 6144")
    k(f"v_mul_lo_u32 v{koff}, v{koff}, s{S_['t1']}")
    k(f"v_lshl_add_u32 v{koff}, v{h}, 4, v{koff}")
    k(f"s_lshl_b32 s{S_['t0']}, s{S_['id']}, 6")
    k(f"v_add_u32 v{koff}, s{S_['t0']}, v{koff}")
    ooff = 10
    k(f"s_lshl_b32 s{S_['t1']}, s{S_['w']}, 8")
    k(f"v_add_u32 v{ooff}, s{S_['t1']}, v{l31}")
    k(f"v_lshlrev_b32 v{ooff}, 11, v{ooff}")
    k(f"v_lshl_add_u32 v{ooff}, v{h}, 4, v{ooff}")
    k(f"v_add_u32 v{ooff}, s{S_['t0']}, v{ooff}")
    KVF, ZF = 24, 40
    x = 11
    k(f"v_lshlrev_b32 v{x}, 10, v{h}")
    k(f"v_lshl_add_u32 v{x}, v{l31}, 5, v{x}")
    k(f"s_mul_i32 s{S_['t0']}, s{S_['id']}, {2 * KVP_BYTES}")
    k(f"s_add_u32 s{S_['t1']}, s{S_['t0']}, {KVP_BYTES}")
    LA, LB = 72, 104
    for jj in range(4):
        if jj == 2:
            k(f"v_add_u32 v{x}, 4096, v{x}")
        for j in range(2):
            k(f"buffer_load_dwordx4 {vr(LA + jj * 8 + j * 4, 4)}, v{x}, {sr(S_['srdX'], 4)}, s{S_['t0']} offen offset:{(jj & 1) * 2048 + j * 16}")
            k(f"buffer_load_dwordx4 {vr(LB + jj * 8 + j * 4, 4)}, v{x}, {sr(S_['srdX'], 4)}, s{S_['t1']} offen offset:{(jj & 1) * 2048 + j * 16}")
    k("s_waitcnt vmcnt(0)")
    for i in range(32):
        k(f"v_add_f32 v{LA + i}, v{LA + i}, v{LB + i}")
    for i in range(16):
        k(f"v_cvt_pk_bf16_f32 v{KVF + i}, v{LA + 2 * i}, v{LA + 2 * i + 1}")
    k(f"v_lshlrev_b32 v{x}, 5, v{h}")
    k(f"s_add_u32 s{S_['t0']}, s{S_['t0']}, 8192")
    k(f"s_add_u32 s{S_['t1']}, s{S_['t1']}, 8192")
    for jj in range(4):
        for j in range(2):
            k(f"buffer_load_dwordx4 {vr(ZF + jj * 8 + j * 4, 4)}, v{x}, {sr(S_['srdX'], 4)}, s{S_['t0']} offen offset:{jj * 64 + j * 16}")
            k(f"buffer_load_dwordx4 {vr(LB + jj * 8 + j * 4, 4)}, v{x}, {sr(S_['srdX'], 4)}, s{S_['t1']} offen offset:{jj * 64 + j * 16}")
    k("s_waitcnt vmcnt(0)")
    for i in range(32):
        k(f"v_add_f32 v{ZF + i}, v{ZF + i}, v{LB + i}")
    for i in range(0, 32, 2):
        bf16r2(k, ZF + i, ZF + i + 1, LA)
    KF, T, P, N, TMP = 72, 80, 96, 112, 128
    NUM = 132
    k(f"s_mov_b32 s{S_['cnt']}, 8")
    Lloop = k.newlabel("qsl")
    k.label(Lloop)
    k(f"buffer_load_dwordx4 {vr(KF, 4)}, v{koff}, {sr(S_['srdA'], 4)}, 0 offen")
    k(f"buffer_load_dwordx4 {vr(KF + 4, 4)}, v{koff}, {sr(S_['srdA'], 4)}, 0 offen offset:32")
    k(f"v_add_u32 v{koff}, {32 * 6144}, v{koff}")
    k("s_waitcnt vmcnt(0) lgkmcnt(0)")
    k(f"v_mfma_f32_32x32x16_bf16 {vr(T, 16)}, {vr(16, 4)}, {vr(KF, 4)}, 0")
    k(f"v_mfma_f32_32x32x16_bf16 {vr(T, 16)}, {vr(20, 4)}, {vr(KF + 4, 4)}, {vr(T, 16)}")
    for i in range(0, 16, 2):
        bf16r2(k, T + i, T + i + 1, TMP)
    phi_softmax(k, T, P, N, TMP)
    for i in range(8):
        k(f"v_cvt_pk_bf16_f32 v{T + i}, v{P + 2 * i}, v{P + 2 * i + 1}")
        k(f"v_cvt_pk_bf16_f32 v{T + 8 + i}, v{N + 2 * i}, v{N + 2 * i + 1}")
    k(f"v_mfma_f32_32x32x16_bf16 {vr(NUM, 16)}, {vr(KVF, 4)}, {vr(T, 4)}, 0")
    for jj in range(1, 4):
        k(f"v_mfma_f32_32x32x16_bf16 {vr(NUM, 16)}, {vr(KVF + 4 * jj, 4)}, {vr(T + 4 * jj, 4)}, {vr(NUM, 16)}")
    den = TMP
    k(f"v_mov_b32 v{den}, 0")
    for i in range(16):
        k(f"v_lshlrev_b32 v{TMP + 1}, 16, v{T + i}")
        k(f"v_fmac_f32 v{den}, v{TMP + 1}, v{ZF + 2 * i}")
        k(f"v_and_b32 v{TMP + 1}, 0xffff0000, v{T + i}")
        k(f"v_fmac_f32 v{den}, v{TMP + 1}, v{ZF + 2 * i + 1}")
    half_reduce32(k, den, TMP + 1, "add")
    bf16r1(k, den, TMP + 1)
    k(f"v_add_f32 v{den}, {f32hex(1e-6)}, v{den}")
    bf16r1(k, den, TMP + 1)
    k(f"v_rcp_f32 v{den}, v{den}")
    for i in range(0, 16, 2):
        bf16r2(k, NUM + i, NUM + i + 1, TMP + 1)
    for i in range(16):
        k(f"v_mul_f32 v{NUM + i}, v{NUM + i}, v{den}")
    for q in range(4):
        k(f"v_cvt_pk_bf16_f32 v{P + 2 * q}, v{NUM + 4 * q}, v{NUM + 4 * q + 1}")
        k(f"v_cvt_pk_bf16_f32 v{P + 2 * q + 1}, v{NUM + 4 * q + 2}, v{NUM + 4 * q + 3}")
    for q in (0, 2):
        k(f"v_permlane32_swap_b32 v{P + 2 * q}, v{P + 2 * q + 2}")
        k(f"v_permlane32_swap_b32 v{P + 2 * q + 1}, v{P + 2 * q + 3}")
    k(f"buffer_store_dwordx4 {vr(P, 4)}, v{ooff}, {sr(S_['srdO'], 4)}, 0 offen")
    k(f"buffer_store_dwordx4 {vr(P + 4, 4)}, v{ooff}, {sr(S_['srdO'], 4)}, 0 offen offset:32")
    k(f"v_add_u32 v{ooff}, {32 * 2048}, v{ooff}")
    k(f"s_sub_u32 s{S_['cnt']}, s{S_['cnt']}, 1")
    k(f"s_cmp_lg_u32 s{S_['cnt']}, 0")
    k(f"s_cbranch_scc1 {Lloop}")
    k.label(Lx)
    k("s_endpgm")


def gen_l3():
    cfg = GemmCfg()
    k = Kernel("l3_kernel")
    g = GemmGen(k, cfg, SG)
    n3 = (S // cfg.BM) * (3584 // cfg.BN)
    nq = 32
    Lend = k.newlabel("end"); Lqs = k.newlabel("qs")
    k(f"s_cmp_ge_u32 s2, {nq + n3}")
    k(f"s_cbranch_scc1 {Lend}")
    k(f"s_cmp_lt_u32 s2, {nq}")
    k(f"s_cbranch_scc1 {Lqs}")
    only = os.environ.get("ONLY", "")
    if only and 'w3' not in only: k("s_endpgm")
    w3_role(k, g, cfg, nq)
    k.label(Lqs)
    if only and 'qs' not in only: k("s_endpgm")
    qside_role(k, 0)
    k.label(Lend)
    k("s_endpgm")
    return k, 168, nq + n3, cfg.lds, cfg.nthreads


def gen_l4():
    cfg = GemmCfg(*[int(x) for x in os.environ.get('CFG4', '4,1,1,2,6').split(',')])
    k = Kernel("l4_kernel")
    S_ = SG
    g = GemmGen(k, cfg, S_, fsets=2)
    n4 = (S // cfg.BM) * (1024 // cfg.BN)
    Lend = k.newlabel("end")
    k(f"s_cmp_ge_u32 s2, {n4}")
    k(f"s_cbranch_scc1 {Lend}")
    xcd_decode(k)
    xcd_tile(k, 1, (S // cfg.BM) // 4, (1024 // cfg.BN) // 2)
    load_ptr(k, S_['ws'], "ws")
    load_ptr(k, 4, "wo")
    load_ptr(k, 6, "w4")
    load_ptr(k, 58, "out")
    k("s_waitcnt lgkmcnt(0)")
    srd(k, S_['srdA'], S_['ws'], S * D * 2, WS_O)
    srd(k, S_['srdB'], 4, D * D * 2)
    srd(k, S_['srdO'], 58, S * D * 2)
    k(f"s_mov_b32 s{S_['koffA']}, 0")
    k(f"s_mov_b32 s{S_['koffB']}, 0")
    k(f"s_mov_b32 s{S_['cnt']}, {D // 64}")
    g.prologue_common()
    g.loader_begin()
    g.loader_segment(2048, 2048, S_['tm'], S_['tn'], std_adv(2048))
    k("s_barrier")
    srd(k, S_['srdA'], S_['ws'], S * 3584 * 2, WS_H3)
    srd(k, S_['srdB'], 6, 3584 * D * 2)
    k(f"s_mov_b32 s{S_['koffA']}, 0")
    k(f"s_mov_b32 s{S_['koffB']}, 0")
    k(f"s_mov_b32 s{S_['cnt']}, {3584 // 64}")
    g.loader_segment(7168, 2048, S_['tm'], S_['tn'], std_adv(2048))
    g.loader_end()
    g.prologue_addr(2048, 2048, S_['tm'], S_['tn'])
    g.zero_acc()
    g.mainloop()
    k("s_barrier")
    nacc = cfg.MB * cfg.NB * 16
    AP = g.tmp
    for i in range(nacc // 2):
        k(f"v_cvt_pk_bf16_f32 v{AP + i}, v{g.acc + 2 * i}, v{g.acc + 2 * i + 1}")
    g.zero_acc()
    k(f"s_mov_b32 s{S_['cnt']}, {3584 // 64}")
    g.mainloop()
    srd(k, S_['srdX'], S_['ws'], S * D * 2, WS_X1)
    srd(k, S_['srdY'], S_['ws'], S * 4, WS_G)
    st = {}

    def pre(g, ctx):
        f = AP + nacc // 2
        st['xoff'] = f; st['xr'] = f + 2; st['g'] = f + 10; st['t'] = f + 12; st['og'] = f + 14
        k(f"v_add_u32 v{f}, s{ctx['row0']}, v{ctx['l31']}")
        k(f"v_lshlrev_b32 v{f + 1}, 2, v{f}")
        k(f"v_lshlrev_b32 v{f}, 11, v{f}")
        k(f"v_lshl_add_u32 v{f}, v{ctx['h']}, 3, v{f}")
        k(f"s_lshl_b32 s{S_['t0']}, s{ctx['col0']}, 1")
        k(f"v_add_u32 v{f}, s{S_['t0']}, v{f}")
        k(f"s_mov_b32 s{S_['t1']}, {32 * 2048}")
        for rb in range(cfg.MB):
            k(f"buffer_load_dword v{st['g'] + rb}, v{f + 1}, {sr(S_['srdY'], 4)}, 0 offen offset:{rb * 128}")

    def hook(g, ctx, cb, rb, a):
        xr, t = st['xr'], st['t']
        soff = "0" if rb == 0 else f"s{S_['t1']}"
        for q in range(4):
            k(f"buffer_load_dwordx2 {vr(xr + 2 * q, 2)}, v{st['xoff']}, {sr(S_['srdX'], 4)}, {soff} offen offset:{cb * 64 + q * 16}")
        for i in range(0, 16, 2):
            bf16r2(k, a + i, a + i + 1, t)
        k("s_waitcnt vmcnt(0)")
        gq = st['g'] + rb
        og = st['og']
        k(f"v_sub_f32 v{og}, 1.0, v{gq}")
        bf16r1(k, og, t)
        for q in range(4):
            for j in range(2):
                i = a + 4 * q + 2 * j
                k(f"v_lshlrev_b32 v{t}, 16, v{xr + 2 * q + j}")
                k(f"v_add_f32 v{i}, v{i}, v{t}")
                k(f"v_and_b32 v{t}, 0xffff0000, v{xr + 2 * q + j}")
                k(f"v_add_f32 v{i + 1}, v{i + 1}, v{t}")
        for i in range(0, 16, 2):
            bf16r2(k, a + i, a + i + 1, t)
        for i in range(16):
            k(f"v_mul_f32 v{a + i}, v{a + i}, v{og}")
        for i in range(0, 16, 2):
            bf16r2(k, a + i, a + i + 1, t)
        ap = AP + (a - g.acc) // 2
        for i in range(8):
            k(f"v_lshlrev_b32 v{t}, 16, v{ap + i}")
            k(f"v_mul_f32 v{t}, v{t}, v{gq}")
            k(f"v_and_b32 v{t + 1}, 0xffff0000, v{ap + i}")
            k(f"v_mul_f32 v{t + 1}, v{t + 1}, v{gq}")
            bf16r2(k, t, t + 1, og + 1)
            k(f"v_add_f32 v{a + 2 * i}, v{a + 2 * i}, v{t}")
            k(f"v_add_f32 v{a + 2 * i + 1}, v{a + 2 * i + 1}, v{t + 1}")
    epilogue_lds(g, 2048, hook=hook, pre=pre, ebase=g.fx[0])
    k.label(Lend)
    k("s_endpgm")
    return k, 168, n4, cfg.lds, 768


def all_kernels():
    ks = [gen.gen_l0(), gen_l1(), gen_l2(), gen_l3(), gen_l4()]
    n = int(os.environ.get("NLAUNCH", "9"))
    return ks[:n]
```

```python
import sys, os
sys.path.insert(0, os.path.dirname(os.path.abspath(__file__)))
from asmdsl import Kernel
from gemm import GemmCfg, GemmGen, vr, sr
from common import *

NAME = "gated_mix__linear_kernel_hedgehog__mixer_s_mlp__prompt"

HEADER = """; Kernarg layout for this problem (104 bytes, ptrs only, base s[0:1]):
"""
KA = dict(A_x=0, wqkv=8, w_phi=16, wo=24, B_x=32, w1=40, w2=48, w3=56, w4=64, gate_w=72, out=80, dbg=88, ws=96)

SG = dict(srdA=8, srdB=12, srdO=16, srdX=20, w=24, wm=25, wn=26, m0a=27, m0b=28, t0=29, t1=30,
          koffA=31, koffB=32, cnt=33, tm=34, tn=35, t2=36, t3=37, gc1=38, gc2=39, ws=40, srdY=44, srdZ=48,
          id=52, t4=53, t5=54, t6=55, xx=70, jj=71)


def kernel_text(k, vgprs, sgprs=102):
    body = k.finish()
    out = [".text", f".globl {k.name}", ".p2align 8", f".type {k.name},@function", f"{k.name}:"]
    out += ["    " + l if not l.endswith(":") else l for l in body]
    vg = (vgprs + 7) // 8 * 8
    assert vg <= 256, vg
    desc = f""".section .rodata,"a"
.p2align 6
.amdhsa_kernel {k.name}
  .amdhsa_next_free_vgpr {vg}
  .amdhsa_next_free_sgpr {sgprs}
  .amdhsa_accum_offset {vg}
  .amdhsa_group_segment_fixed_size 0
  .amdhsa_kernarg_size 104
  .amdhsa_user_sgpr_count 2
  .amdhsa_user_sgpr_kernarg_segment_ptr 1
  .amdhsa_system_sgpr_workgroup_id_x 1
.end_amdhsa_kernel"""
    return "\n".join(out), desc


def load_ptr(k, dst, name):
    k(f"s_load_dwordx2 s[{dst}:{dst + 1}], s[0:1], {KA[name]}")


def xcd_decode(k):
    k(f"s_and_b32 s{SG['xx']}, s2, 7")
    k(f"s_lshr_b32 s{SG['jj']}, s2, 3")


def xcd_tile(k, gm_shift, bm, bn, jbase=0):
    S_ = SG
    k(f"s_sub_u32 s{S_['t0']}, s{S_['jj']}, {jbase}")
    k(f"s_mul_hi_u32 s{S_['t1']}, s{S_['t0']}, {(2**32 + bn - 1) // bn}")
    k(f"s_mul_i32 s{S_['tn']}, s{S_['t1']}, {bn}")
    k(f"s_sub_u32 s{S_['tn']}, s{S_['t0']}, s{S_['tn']}")
    k(f"s_lshr_b32 s{S_['tm']}, s{S_['xx']}, {gm_shift}")
    k(f"s_mul_i32 s{S_['tm']}, s{S_['tm']}, {bm}")
    k(f"s_add_u32 s{S_['tm']}, s{S_['tm']}, s{S_['t1']}")
    k(f"s_and_b32 s{S_['t1']}, s{S_['xx']}, {(1 << gm_shift) - 1}")
    k(f"s_mul_i32 s{S_['t1']}, s{S_['t1']}, {bn}")
    k(f"s_add_u32 s{S_['tn']}, s{S_['tn']}, s{S_['t1']}")


def tile_decode(k, ntn, base):
    S_ = SG
    k(f"s_sub_u32 s{S_['id']}, s2, {base}")
    k(f"s_mul_hi_u32 s{S_['tm']}, s{S_['id']}, {(2**32 + ntn - 1) // ntn}")
    k(f"s_mul_i32 s{S_['t0']}, s{S_['tm']}, {ntn}")
    k(f"s_sub_u32 s{S_['tn']}, s{S_['id']}, s{S_['t0']}")


def epilogue_lds(g, ldo, hook=None, pre=None, post=None, ebase=None):
    k, c, S_ = g.k, g.cfg, SG
    assert c.NB == 2
    t = ebase if ebase is not None else g.fx[0]
    lane, l31, h, off, wa, ra = t, t + 1, t + 2, t + 3, t + 4, t + 5
    x, y = t + 6, t + 7
    pk = (t + 8 + 3) // 4 * 4
    z = pk + 8
    pa = z + 1
    free = (pa + 4 + 3) // 4 * 4
    rows = c.MB * 32
    k("s_barrier")
    k(f"v_and_b32 v{lane}, 63, v{g.vtid}")
    k(f"v_and_b32 v{l31}, 31, v{lane}")
    k(f"v_lshrrev_b32 v{h}, 5, v{lane}")
    k(f"s_mul_i32 s{S_['t2']}, s{S_['w']}, {rows * 128}")
    k(f"v_lshlrev_b32 v{wa}, 7, v{l31}")
    k(f"v_add_u32 v{wa}, s{S_['t2']}, v{wa}")
    k(f"v_and_b32 v{ra}, 7, v{l31}")
    k(f"v_lshrrev_b32 v{x}, 3, v{lane}")
    k(f"v_and_b32 v{y}, 7, v{lane}")
    k(f"v_lshlrev_b32 v{z}, 7, v{x}")
    k(f"v_lshl_add_u32 v{z}, v{y}, 4, v{z}")
    k(f"v_add_u32 v{z}, s{S_['t2']}, v{z}")
    k(f"s_mul_i32 s{S_['t0']}, s{S_['tm']}, {c.BM}")
    k(f"s_mul_i32 s{S_['t1']}, s{S_['wm']}, {c.MB * 32}")
    k(f"s_add_u32 s{S_['t0']}, s{S_['t0']}, s{S_['t1']}")
    k(f"s_mov_b32 s{S_['t4']}, s{S_['t0']}")
    k(f"v_add_u32 v{off}, s{S_['t0']}, v{x}")
    k(f"s_mov_b32 s{S_['t1']}, {ldo}")
    k(f"v_mul_lo_u32 v{off}, v{off}, s{S_['t1']}")
    k(f"v_xor_b32 v{y}, v{y}, v{x}")
    k(f"v_lshlrev_b32 v{y}, 4, v{y}")
    k(f"s_mul_i32 s{S_['t5']}, s{S_['tn']}, {c.BN}")
    k(f"s_mul_i32 s{S_['t1']}, s{S_['wn']}, {c.NB * 32}")
    k(f"s_add_u32 s{S_['t5']}, s{S_['t5']}, s{S_['t1']}")
    k(f"s_lshl_b32 s{S_['t0']}, s{S_['t5']}, 1")
    k(f"v_add3_u32 v{off}, v{off}, v{y}, s{S_['t0']}")
    for cb in range(c.NB):
        for qq in range(2):
            p = pa + cb * 2 + qq
            k(f"v_add_u32 v{p}, {cb * 4 + qq * 2}, v{h}")
            k(f"v_xor_b32 v{p}, v{p}, v{ra}")
            k(f"v_lshl_add_u32 v{p}, v{p}, 4, v{wa}")
    ctx = dict(lane=lane, l31=l31, h=h, free=free, row0=S_['t4'], col0=S_['t5'])
    if pre:
        pre(g, ctx)
    for rb in range(c.MB):
        for cb in range(c.NB):
            a = g.accr(cb, rb)
            if hook:
                hook(g, ctx, cb, rb, a)
            for q in range(4):
                k(f"v_cvt_pk_bf16_f32 v{pk + 2 * q}, v{a + 4 * q}, v{a + 4 * q + 1}")
                k(f"v_cvt_pk_bf16_f32 v{pk + 2 * q + 1}, v{a + 4 * q + 2}, v{a + 4 * q + 3}")
            for q in (0, 2):
                k(f"v_permlane32_swap_b32 v{pk + 2 * q}, v{pk + 2 * q + 2}")
                k(f"v_permlane32_swap_b32 v{pk + 2 * q + 1}, v{pk + 2 * q + 3}")
            k(f"ds_write_b128 v{pa + cb * 2}, {vr(pk, 4)} offset:{rb * 4096}")
            k(f"ds_write_b128 v{pa + cb * 2 + 1}, {vr(pk + 4, 4)} offset:{rb * 4096}")
    if post:
        post(g, ctx)
    k("s_waitcnt lgkmcnt(0)")
    n = rows // 8
    for j in range(n):
        k(f"ds_read_b128 {vr(g.acc + 4 * j, 4)}, v{z} offset:{j * 1024}")
    for j in range(n):
        k(f"s_waitcnt lgkmcnt({min(15, n - 1 - j)})")
        k(f"buffer_store_dwordx4 {vr(g.acc + 4 * j, 4)}, v{off}, {sr(S_['srdO'], 4)}, 0 offen")
        if j != n - 1:
            k(f"v_add_u32 v{off}, {8 * ldo}, v{off}")
    return free


def gelu_consts(k):
    k(f"s_mov_b32 s{SG['gc2']}, {f32hex(GELU_C2)}")


def gelu_block(k, a, n, t):
    for i in range(0, n, 2):
        bf16r2(k, a + i, a + i + 1, t)
    k(f"v_mov_b32 v{t + 2}, {f32hex(GELU_C1)}")
    for i in range(n):
        x = a + i
        k(f"v_mul_f32 v{t}, v{x}, v{x}")
        k(f"v_fma_f32 v{t}, v{t}, s{SG['gc2']}, v{t + 2}")
        k(f"v_mul_f32 v{t}, v{t}, v{x}")
        k(f"v_exp_f32 v{t}, v{t}")
        k(f"v_add_f32 v{t}, 1.0, v{t}")
        k(f"v_rcp_f32 v{t}, v{t}")
        k(f"v_mul_f32 v{x}, v{x}, v{t}")


def std_adv(ldb):
    def adv(k):
        k(f"s_add_u32 s{SG['koffA']}, s{SG['koffA']}, 128")
        k(f"s_add_u32 s{SG['koffB']}, s{SG['koffB']}, {64 * ldb}")
    return adv


def gen_l0():
    k = Kernel("l0_kernel")
    S_ = SG
    Lend = k.newlabel("end"); Lgate = k.newlabel("gate"); Lng = k.newlabel("ng")
    k("s_cmp_ge_u32 s2, 512")
    k(f"s_cbranch_scc1 {Lend}")
    load_ptr(k, S_['ws'], "ws")
    k("v_and_b32 v1, 63, v0")
    k("v_lshrrev_b32 v2, 6, v0")
    k(f"v_readfirstlane_b32 s{S_['w']}, v2")
    k("v_lshlrev_b32 v3, 4, v1")
    k("s_cmp_ge_u32 s2, 256")
    k(f"s_cbranch_scc1 {Lgate}")
    load_ptr(k, 4, "A_x")
    k("s_waitcnt lgkmcnt(0)")
    srd(k, S_['srdA'], 4, S * D * 2)
    srd(k, S_['srdO'], S_['ws'], S * D * 2, WS_XN1)
    k("s_cmp_ge_u32 s2, 4")
    k(f"s_cbranch_scc1 {Lng}")
    k(f"s_cmp_lg_u32 s{S_['w']}, 0")
    k(f"s_cbranch_scc1 {Lng}")
    srd(k, S_['srdX'], S_['ws'], 4096 + S * D * 2 + 4096, WS_HG)
    k(f"s_lshl_b32 s{S_['t0']}, s2, 11")
    k(f"s_cmp_ge_u32 s2, 2")
    k(f"s_cselect_b32 s{S_['t1']}, {S * D * 2}, 0")
    k(f"s_add_u32 s{S_['t0']}, s{S_['t0']}, s{S_['t1']}")
    for i in range(4):
        k(f"v_mov_b32 v{40 + i}, 0")
    k(f"buffer_store_dwordx4 v[40:43], v3, {sr(S_['srdX'], 4)}, s{S_['t0']} offen")
    k(f"buffer_store_dwordx4 v[40:43], v3, {sr(S_['srdX'], 4)}, s{S_['t0']} offen offset:1024")
    k.label(Lng)
    k(f"s_lshl_b32 s{S_['t0']}, s2, 3")
    k(f"s_add_u32 s{S_['t0']}, s{S_['t0']}, s{S_['w']}")
    k(f"s_lshl_b32 s{S_['t0']}, s{S_['t0']}, 11")
    k(f"buffer_load_dwordx4 v[4:7], v3, {sr(S_['srdA'], 4)}, s{S_['t0']} offen")
    k(f"buffer_load_dwordx4 v[8:11], v3, {sr(S_['srdA'], 4)}, s{S_['t0']} offen offset:1024")
    k("s_waitcnt vmcnt(0)")
    unpack8(k, 4, 16); unpack8(k, 8, 24)
    k("v_add_f32 v32, v16, v17")
    for i in range(2, 16):
        k(f"v_add_f32 v32, v32, v{16 + i}")
    allreduce(k, 32, 33)
    k(f"v_mul_f32 v32, {f32hex(1.0 / D)}, v32")
    k("v_sub_f32 v34, v16, v32")
    k("v_mul_f32 v35, v34, v34")
    for i in range(1, 16):
        k(f"v_sub_f32 v34, v{16 + i}, v32")
        k("v_fmac_f32 v35, v34, v34")
    allreduce(k, 35, 33)
    k(f"v_mul_f32 v35, {f32hex(1.0 / D)}, v35")
    bf16r2(k, 32, 35, 33)
    k(f"v_add_f32 v35, {f32hex(1e-5)}, v35")
    bf16r1(k, 35, 33)
    k("v_sqrt_f32 v35, v35")
    bf16r1(k, 35, 33)
    k("v_rcp_f32 v35, v35")
    for i in range(16):
        k(f"v_sub_f32 v{16 + i}, v{16 + i}, v32")
    for i in range(0, 16, 2):
        bf16r2(k, 16 + i, 17 + i, 33)
    for i in range(16):
        k(f"v_mul_f32 v{16 + i}, v{16 + i}, v35")
    for i in range(8):
        k(f"v_cvt_pk_bf16_f32 v{4 + i}, v{16 + 2 * i}, v{17 + 2 * i}")
    k(f"buffer_store_dwordx4 v[4:7], v3, {sr(S_['srdO'], 4)}, s{S_['t0']} offen")
    k(f"buffer_store_dwordx4 v[8:11], v3, {sr(S_['srdO'], 4)}, s{S_['t0']} offen offset:1024")
    k("s_endpgm")
    k.label(Lgate)
    load_ptr(k, 4, "A_x")
    load_ptr(k, 6, "gate_w")
    k("s_waitcnt lgkmcnt(0)")
    srd(k, S_['srdA'], 4, S * D * 2)
    srd(k, S_['srdB'], 6, D * 2)
    srd(k, S_['srdO'], S_['ws'], S * 4, WS_G)
    k(f"s_sub_u32 s{S_['t0']}, s2, 256")
    k(f"s_lshl_b32 s{S_['t0']}, s{S_['t0']}, 3")
    k(f"s_add_u32 s{S_['t0']}, s{S_['t0']}, s{S_['w']}")
    k(f"s_lshl_b32 s{S_['t1']}, s{S_['t0']}, 11")
    k(f"buffer_load_dwordx4 v[4:7], v3, {sr(S_['srdA'], 4)}, s{S_['t1']} offen")
    k(f"buffer_load_dwordx4 v[8:11], v3, {sr(S_['srdA'], 4)}, s{S_['t1']} offen offset:1024")
    k(f"buffer_load_dwordx4 v[40:43], v3, {sr(S_['srdB'], 4)}, 0 offen")
    k(f"buffer_load_dwordx4 v[44:47], v3, {sr(S_['srdB'], 4)}, 0 offen offset:1024")
    k("s_waitcnt vmcnt(0)")
    unpack8(k, 4, 16); unpack8(k, 8, 24)
    unpack8(k, 40, 48); unpack8(k, 44, 56)
    for i in range(16):
        k(f"v_mul_f32 v{16 + i}, v{16 + i}, v{48 + i}")
    for i in range(0, 16, 2):
        bf16r2(k, 16 + i, 17 + i, 33)
    k("v_add_f32 v32, v16, v17")
    for i in range(2, 16):
        k(f"v_add_f32 v32, v32, v{16 + i}")
    allreduce(k, 32, 33)
    bf16r1(k, 32, 33)
    k(f"v_mul_f32 v32, {f32hex(-LOG2E)}, v32")
    k("v_exp_f32 v32, v32")
    k("v_add_f32 v32, 1.0, v32")
    k("v_rcp_f32 v32, v32")
    bf16r1(k, 32, 33)
    k(f"s_lshl_b32 s{S_['t1']}, s{S_['t0']}, 2")
    k("v_cmp_eq_u32 vcc, 0, v1")
    k("s_and_saveexec_b64 s[56:57], vcc")
    k("v_mov_b32 v34, 0")
    k(f"buffer_store_dword v32, v34, {sr(S_['srdO'], 4)}, s{S_['t1']} offen")
    k.label(Lend)
    k("s_endpgm")
    return k, 64, 512, 0


def build(kernels, path):
    head = HEADER
    body, descs = [], []
    for kk_ in kernels:
        k, vg, grid, lds = kk_[:4]
        blk = kk_[4] if len(kk_) > 4 else 512
        head += f"; @launch kernel={k.name} grid=({grid},1,1) block=({blk},1,1) lds={lds}\n"
        b, d = kernel_text(k, vg)
        body.append(b); descs.append(d)
    txt = head + '.amdgcn_target "amdgcn-amd-amdhsa--gfx950"\n' + "\n".join(body) + "\n" + "\n".join(descs) + "\n"
    open(path, "w").write(txt)
    return txt


if __name__ == "__main__":
    out = sys.argv[1] if len(sys.argv) > 1 else "test_all.s"
    import launches
    build(launches.all_kernels(), out)
    print("wrote", out)
```

```python
from asmdsl import Kernel
import os
EXP = os.environ.get('EXP', '')

BK = 64


class GemmCfg:
    def __init__(self, WM=4, WN=2, MB=2, NB=2, stages=3, NL=int(os.environ.get('NL', '4'))):
        self.WM, self.WN, self.MB, self.NB = WM, WN, MB, NB
        self.NL = NL
        self.BM = WM * MB * 32
        self.BN = WN * NB * 32
        self.nw = WM * WN
        self.stages = stages
        self.a_bytes = self.BM * BK * 2
        self.b_bytes = BK * self.BN * 2
        self.stage_bytes = self.a_bytes + self.b_bytes
        self.lds = self.stage_bytes * stages
        self.nthreads = (self.nw + NL) * 64
        self.a_rows_per_wave = self.BM // NL
        assert self.a_rows_per_wave % 8 == 0
        self.a_dma = self.a_rows_per_wave // 8
        self.b_row_bytes = self.BN * 2
        self.b_rows_per_dma = 1024 // self.b_row_bytes
        self.b_rows_per_wave = BK // NL
        assert self.b_rows_per_wave % self.b_rows_per_dma == 0
        self.b_dma = self.b_rows_per_wave // self.b_rows_per_dma
        self.ndma = self.a_dma + self.b_dma


class Regs:
    def __init__(self, start=0):
        self.n = start

    def alloc(self, cnt, align=1):
        self.n = (self.n + align - 1) // align * align
        r = self.n
        self.n += cnt
        return r


def vr(base, cnt):
    return "v[%d:%d]" % (base, base + cnt - 1)


def sr(base, cnt):
    return "s[%d:%d]" % (base, base + cnt - 1)


class GemmGen:
    def __init__(self, k, cfg, S, fsets=4):
        self.fsets = fsets
        self.k = k
        self.cfg = cfg
        self.S = S
        c = cfg
        R = Regs(0)
        self.acc = R.alloc(c.NB * c.MB * 16, 16)
        self.fx = [R.alloc(c.MB * 4, 4) for _ in range(fsets)]
        self.fw = [R.alloc(c.NB * 4, 4) for _ in range(fsets)]
        self.ax = R.alloc(4 * c.stages)
        self.aw = R.alloc(c.NB * c.stages)
        self.vtid = R.alloc(1)
        self.tmp = R.alloc(0, 4)
        self.R = R

    def accr(self, cb, rb):
        return self.acc + (cb * self.cfg.MB + rb) * 16

    def prologue_common(self):
        k, c, S = self.k, self.cfg, self.S
        t = self.tmp
        k(f"v_mov_b32 v{self.vtid}, v0")
        k(f"v_lshrrev_b32 v{t}, 6, v0")
        k(f"v_readfirstlane_b32 s{S['w']}, v{t}")

    def loader(self, lda, ldb, s_tm, s_tn, advance, bmap=None):
        self.loader_begin()
        self.loader_segment(lda, ldb, s_tm, s_tn, advance, bmap)
        self.loader_end()

    def loader_begin(self, extra=None):
        k, c, S = self.k, self.cfg, self.S
        t = 4
        lane = t
        self.Lcomp = k.newlabel("comp")
        k(f"s_cmp_lt_u32 s{S['w']}, {c.nw}")
        k(f"s_cbranch_scc1 {self.Lcomp}")
        Lok = k.newlabel("lok")
        k(f"s_cmp_lt_u32 s{S['w']}, {c.nw + c.NL}")
        k(f"s_cbranch_scc1 {Lok}")
        if extra:
            extra()
        k("s_endpgm")
        k.label(Lok)
        k(f"s_sub_u32 s{S['w']}, s{S['w']}, {c.nw}")
        k(f"v_and_b32 v{lane}, 63, v0")
        k(f"s_mul_i32 s{S['m0a']}, s{S['w']}, {c.a_rows_per_wave * 128}")
        k(f"s_mul_i32 s{S['m0b']}, s{S['w']}, {c.b_rows_per_wave * c.b_row_bytes}")
        k(f"s_add_u32 s{S['m0b']}, s{S['m0b']}, {c.a_bytes}")

    def loader_end(self):
        self.k("s_endpgm")
        self.k.label(self.Lcomp)

    def loader_segment(self, lda, ldb, s_tm, s_tn, advance, bmap=None):
        k, c, S = self.k, self.cfg, self.S
        t = 4
        lane = t
        a, b2, d = t + 2, t + 3, t + 4
        R2 = Regs(t + 8)
        da = R2.alloc(c.a_dma)
        db = R2.alloc(c.b_dma)
        k(f"v_lshrrev_b32 v{a}, 3, v{lane}")
        k(f"v_lshrrev_b32 v{b2}, 4, v{lane}")
        k(f"v_and_b32 v{d}, 7, v{lane}")
        k(f"s_mul_i32 s{S['t0']}, s{s_tm}, {c.BM}")
        k(f"s_mul_i32 s{S['t1']}, s{S['w']}, {c.a_rows_per_wave}")
        k(f"s_add_u32 s{S['t0']}, s{S['t0']}, s{S['t1']}")
        k(f"s_mov_b32 s{S['t1']}, {lda}")
        x, y = t + 5, t + 6
        for j in range(c.a_dma):
            k(f"v_add_u32 v{x}, s{S['t0']}, v{a}")
            if j:
                k(f"v_add_u32 v{x}, {8 * j}, v{x}")
            k(f"v_mul_lo_u32 v{x}, v{x}, s{S['t1']}")
            if j & 1:
                k(f"v_or_b32 v{y}, 4, v{b2}")
                k(f"v_xor_b32 v{y}, v{y}, v{d}")
            else:
                k(f"v_xor_b32 v{y}, v{b2}, v{d}")
            k(f"v_lshlrev_b32 v{y}, 4, v{y}")
            k(f"v_add_u32 v{da + j}, v{x}, v{y}")
        cpr = c.b_row_bytes // 16
        lgc = {16: 4, 8: 3}[cpr]
        k(f"v_lshrrev_b32 v{a}, {lgc}, v{lane}")
        k(f"v_and_b32 v{d}, {cpr - 1}, v{lane}")
        if cpr == 16:
            k(f"v_lshlrev_b32 v{b2}, 2, v{a}")
        else:
            k(f"v_lshrrev_b32 v{b2}, 1, v{a}")
            k(f"v_and_b32 v{b2}, 1, v{b2}")
            k(f"v_lshlrev_b32 v{b2}, 2, v{b2}")
        k(f"v_xor_b32 v{d}, v{d}, v{b2}")
        if bmap == 'kv':
            k(f"v_bfe_u32 v{x}, v{d}, 2, 1")
            k(f"v_lshrrev_b32 v{y}, 3, v{d}")
            k(f"v_and_b32 v{d}, 3, v{d}")
            k(f"v_lshlrev_b32 v{d}, 4, v{d}")
            k(f"v_lshl_add_u32 v{d}, v{x}, 11, v{d}")
            k(f"v_lshl_add_u32 v{d}, v{y}, 6, v{d}")
            k(f"s_lshl_b32 s{S['t1']}, s{s_tn}, 7")
            k(f"s_add_u32 s{S['t1']}, s{S['t1']}, 2048")
        else:
            k(f"v_lshlrev_b32 v{d}, 4, v{d}")
            k(f"s_mul_i32 s{S['t1']}, s{s_tn}, {c.BN * 2}")
        k(f"s_mul_i32 s{S['t0']}, s{S['w']}, {c.b_rows_per_wave}")
        k(f"v_add_u32 v{d}, s{S['t1']}, v{d}")
        k(f"s_mov_b32 s{S['t1']}, {ldb}")
        for j in range(c.b_dma):
            k(f"v_add_u32 v{x}, s{S['t0']}, v{a}")
            if j:
                k(f"v_add_u32 v{x}, {c.b_rows_per_dma * j}, v{x}")
            k(f"v_mul_lo_u32 v{x}, v{x}, s{S['t1']}")
            k(f"v_add_u32 v{db + j}, v{x}, v{d}")

        def dma(stage):
            if 'nodma' in EXP:
                advance(k)
                return
            base = stage * c.stage_bytes
            for j in range(c.a_dma):
                k(f"s_add_u32 m0, s{S['m0a']}, {base + j * 1024}")
                k(f"buffer_load_dwordx4 v{da + j}, {sr(S['srdA'], 4)}, s{S['koffA']} offen lds")
            for j in range(c.b_dma):
                k(f"s_add_u32 m0, s{S['m0b']}, {base + j * 1024}")
                k(f"buffer_load_dwordx4 v{db + j}, {sr(S['srdB'], 4)}, s{S['koffB']} offen lds")
            advance(k)
        nd = c.ndma
        PD = c.stages - 1
        Lloop = k.newlabel("lloop"); Ldone = k.newlabel("ldone")
        for i in range(PD):
            dma(i)
        k.label(Lloop)
        for st in range(c.stages):
            Lw0 = k.newlabel("w0"); Lw1 = k.newlabel("w1"); Lnd = k.newlabel("nd")
            k(f"s_cmp_lt_u32 s{S['cnt']}, {PD}")
            k(f"s_cbranch_scc1 {Lw0}")
            k(f"s_waitcnt vmcnt({nd * (PD - 1)})")
            k(f"s_branch {Lw1}")
            k.label(Lw0)
            k(f"s_waitcnt vmcnt(0)")
            k.label(Lw1)
            k("s_barrier")
            k(f"s_cmp_le_u32 s{S['cnt']}, {PD}")
            k(f"s_cbranch_scc1 {Lnd}")
            dma((st + PD) % c.stages)
            k.label(Lnd)
            k(f"s_sub_u32 s{S['cnt']}, s{S['cnt']}, 1")
            k(f"s_cmp_eq_u32 s{S['cnt']}, 0")
            if st != c.stages - 1:
                k(f"s_cbranch_scc1 {Ldone}")
            else:
                k(f"s_cbranch_scc0 {Lloop}")
        k.label(Ldone)

    def prologue_addr(self, lda, ldb, s_tm, s_tn):
        k, c, S = self.k, self.cfg, self.S
        t = self.tmp
        lane = t
        k(f"v_and_b32 v{lane}, 63, v{self.vtid}")
        lg = {1: 0, 2: 1, 4: 2, 8: 3}[c.WN]
        k(f"s_lshr_b32 s{S['wm']}, s{S['w']}, {lg}")
        k(f"s_and_b32 s{S['wn']}, s{S['w']}, {c.WN - 1}")
        cpr = c.b_row_bytes // 16
        l31, h, s = t + 2, t + 3, t + 4
        k(f"v_and_b32 v{l31}, 31, v{lane}")
        k(f"v_lshrrev_b32 v{h}, 5, v{lane}")
        k(f"v_lshrrev_b32 v{s}, 1, v{lane}")
        k(f"v_and_b32 v{s}, 7, v{s}")
        k(f"s_mul_i32 s{S['t0']}, s{S['wm']}, {c.MB * 32}")
        x = t + 5
        k(f"v_add_u32 v{x}, s{S['t0']}, v{l31}")
        k(f"v_lshlrev_b32 v{x}, 7, v{x}")
        for kk in range(4):
            y = t + 6
            k(f"v_add_u32 v{y}, {kk * 2}, v{h}")
            k(f"v_xor_b32 v{y}, v{y}, v{s}")
            k(f"v_lshlrev_b32 v{y}, 4, v{y}")
            k(f"v_add_u32 v{self.ax + kk}, v{x}, v{y}")
            for st in range(1, c.stages):
                k(f"v_add_u32 v{self.ax + st * 4 + kk}, {st * c.stage_bytes}, v{self.ax + kk}")
        g, r_, c_ = t + 2, t + 3, t + 4
        k(f"v_lshrrev_b32 v{g}, 4, v{lane}")
        k(f"v_and_b32 v{r_}, 15, v{lane}")
        k(f"v_lshrrev_b32 v{r_}, 2, v{r_}")
        k(f"v_and_b32 v{c_}, 3, v{lane}")
        row = t + 5
        k(f"v_lshrrev_b32 v{row}, 1, v{g}")
        k(f"v_lshlrev_b32 v{row}, 3, v{row}")
        k(f"v_add_u32 v{row}, v{row}, v{r_}")
        k(f"v_mul_u32_u24 v{row}, {c.b_row_bytes}, v{row}")
        ch = t + 6
        k(f"v_and_b32 v{ch}, 1, v{g}")
        k(f"v_lshlrev_b32 v{ch}, 1, v{ch}")
        y = t + 7
        k(f"v_lshrrev_b32 v{y}, 1, v{c_}")
        k(f"v_add_u32 v{ch}, v{ch}, v{y}")
        k(f"s_mul_i32 s{S['t0']}, s{S['wn']}, {c.NB * 4}")
        k(f"v_add_u32 v{ch}, s{S['t0']}, v{ch}")
        if cpr == 16:
            k(f"v_lshlrev_b32 v{y}, 2, v{r_}")
        else:
            k(f"v_lshrrev_b32 v{y}, 1, v{r_}")
            k(f"v_lshlrev_b32 v{y}, 2, v{y}")
        k(f"v_and_b32 v{c_}, 1, v{c_}")
        k(f"v_lshlrev_b32 v{c_}, 3, v{c_}")
        k(f"v_add_u32 v{row}, v{row}, v{c_}")
        k(f"v_add_u32 v{row}, {c.a_bytes}, v{row}")
        for cb in range(c.NB):
            z = self.aw + cb
            k(f"v_add_u32 v{z}, {cb * 4}, v{ch}")
            k(f"v_xor_b32 v{z}, v{z}, v{y}")
            k(f"v_lshlrev_b32 v{z}, 4, v{z}")
            k(f"v_add_u32 v{z}, v{z}, v{row}")
            for st in range(1, c.stages):
                k(f"v_add_u32 v{self.aw + st * c.NB + cb}, {st * c.stage_bytes}, v{z}")

    def zero_acc(self):
        c = self.cfg
        for i in range(c.NB * c.MB * 16):
            self.k(f"v_mov_b32 v{self.acc + i}, 0")
        for p in ((2, 3) if self.fsets == 4 else (1,)):
            for i in range(c.MB * 4):
                self.k(f"v_mov_b32 v{self.fx[p] + i}, 0")
            for i in range(c.NB * 4):
                self.k(f"v_mov_b32 v{self.fw[p] + i}, 0")

    def reads(self, stage, kk, p):
        k, c = self.k, self.cfg
        if 'noread' in EXP:
            return
        for rb in range(c.MB):
            k(f"ds_read_b128 {vr(self.fx[p] + rb * 4, 4)}, v{self.ax + stage * 4 + kk} offset:{rb * 4096}")
        for cb in range(c.NB):
            for j in range(2):
                off = (kk * 16 + j * 4) * c.b_row_bytes
                k(f"ds_read_b64_tr_b16 {vr(self.fw[p] + cb * 4 + j * 2, 2)}, v{self.aw + stage * c.NB + cb} offset:{off}")

    def mfmas(self, p):
        k, c = self.k, self.cfg
        if 'nomfma' in EXP:
            return
        for cb in range(c.NB):
            for rb in range(c.MB):
                a = vr(self.accr(cb, rb), 16)
                if 'm16' in EXP:
                    for hh in range(2):
                        a4 = vr(self.accr(cb, rb) + 4 * hh + 8 * (p & 1), 4)
                        k(f"v_mfma_f32_16x16x32_bf16 {a4}, {vr(self.fw[p] + cb * 4, 4)}, {vr(self.fx[p] + rb * 4, 4)}, {a4}")
                    continue
                k(f"v_mfma_f32_32x32x16_bf16 {a}, {vr(self.fw[p] + cb * 4, 4)}, {vr(self.fx[p] + rb * 4, 4)}, {a}")

    def mainloop(self):
        if self.fsets == 4:
            return self.mainloop4()
        k, c, S = self.k, self.cfg, self.S
        nrd = c.MB + 2 * c.NB
        if 'noread' in EXP:
            nrd = 0
        Lloop = k.newlabel("loop")
        Lexit = k.newlabel("exit")
        k.label(Lloop)
        for st in range(c.stages):
            k("s_waitcnt lgkmcnt(0)")
            k("s_barrier")
            self.reads(st, 0, 0)
            self.mfmas(1)
            self.reads(st, 1, 1)
            k(f"s_waitcnt lgkmcnt({nrd})")
            self.mfmas(0)
            self.reads(st, 2, 0)
            k(f"s_waitcnt lgkmcnt({nrd})")
            self.mfmas(1)
            self.reads(st, 3, 1)
            k(f"s_waitcnt lgkmcnt({nrd})")
            self.mfmas(0)
            k(f"s_sub_u32 s{S['cnt']}, s{S['cnt']}, 1")
            k(f"s_cmp_eq_u32 s{S['cnt']}, 0")
            if st != c.stages - 1:
                k(f"s_cbranch_scc1 {Lexit}")
            else:
                k(f"s_cbranch_scc0 {Lloop}")
        k.label(Lexit)
        k("s_waitcnt lgkmcnt(0)")
        self.mfmas(1)

    def mainloop4(self):
        k, c, S = self.k, self.cfg, self.S
        nrd = c.MB + 2 * c.NB
        if 'noread' in EXP:
            nrd = 0
        Lloop = k.newlabel("loop")
        Lexit = k.newlabel("exit")
        k.label(Lloop)
        for st in range(c.stages):
            k("s_waitcnt lgkmcnt(0)")
            k("s_barrier")
            self.reads(st, 0, 0)
            self.mfmas(2)
            self.reads(st, 1, 1)
            self.mfmas(3)
            self.reads(st, 2, 2)
            k(f"s_waitcnt lgkmcnt({min(15, 2 * nrd)})")
            self.mfmas(0)
            self.reads(st, 3, 3)
            k(f"s_waitcnt lgkmcnt({min(15, 2 * nrd)})")
            self.mfmas(1)
            k(f"s_sub_u32 s{S['cnt']}, s{S['cnt']}, 1")
            k(f"s_cmp_eq_u32 s{S['cnt']}, 0")
            if st != c.stages - 1:
                k(f"s_cbranch_scc1 {Lexit}")
            else:
                k(f"s_cbranch_scc0 {Lloop}")
        k.label(Lexit)
        k(f"s_waitcnt lgkmcnt({nrd})")
        self.mfmas(2)
        k("s_waitcnt lgkmcnt(0)")
        self.mfmas(3)
```

```python
import os
from gen import *
import gen


def gemm_setup(k, g, cfg, a_ptr, a_off, a_bytes, b_name, b_bytes, o_off, o_bytes, lda, ldb, ksteps, koffA0=0, adv=None, bmap=None):
    S_ = SG
    load_ptr(k, S_['ws'], "ws")
    load_ptr(k, 6, b_name)
    if a_ptr != "ws":
        load_ptr(k, 4, a_ptr)
    k("s_waitcnt lgkmcnt(0)")
    if a_ptr == "ws":
        srd(k, S_['srdA'], S_['ws'], a_bytes, a_off)
    else:
        srd(k, S_['srdA'], 4, a_bytes)
    srd(k, S_['srdB'], 6, b_bytes)
    if o_off is not None:
        srd(k, S_['srdO'], S_['ws'], o_bytes, o_off)
    k(f"s_mov_b32 s{S_['koffA']}, {koffA0}")
    k(f"s_mov_b32 s{S_['koffB']}, 0")
    k(f"s_mov_b32 s{S_['cnt']}, {ksteps}")
    g.prologue_common()
    g.loader(lda, ldb, S_['tm'], S_['tn'], adv or std_adv(ldb), bmap)
    g.prologue_addr(lda, ldb, S_['tm'], S_['tn'])
    g.zero_acc()


def phi_softmax2(k, T, P8, N8, R, t):
    mx, mn, t0 = t, t + 1, t + 2
    na, nb = t + 4, t + 6
    k(f"v_max3_f32 v{mx}, v{T}, v{T + 1}, v{T + 2}")
    k(f"v_min3_f32 v{mn}, v{T}, v{T + 1}, v{T + 2}")
    for i in range(3, 15, 2):
        k(f"v_max3_f32 v{mx}, v{mx}, v{T + i}, v{T + i + 1}")
        k(f"v_min3_f32 v{mn}, v{mn}, v{T + i}, v{T + i + 1}")
    k(f"v_max_f32 v{mx}, v{mx}, v{T + 15}")
    k(f"v_min_f32 v{mn}, v{mn}, v{T + 15}")
    half_reduce32(k, mx, t0, "max")
    half_reduce32(k, mn, t0, "min")
    k(f"v_mul_f32 v{na}, {f32hex(-LOG2E)}, v{mx}")
    k(f"v_mul_f32 v{nb}, {f32hex(LOG2E)}, v{mn}")
    k(f"v_mov_b32 v{na + 1}, v{na}")
    k(f"v_mov_b32 v{nb + 1}, v{nb}")
    P, N = R, R + 16
    for i in range(0, 16, 2):
        k(f"v_pk_fma_f32 {vr(P + i, 2)}, {vr(T + i, 2)}, s[58:59], {vr(na, 2)}")
        k(f"v_pk_fma_f32 {vr(N + i, 2)}, {vr(T + i, 2)}, s[58:59], {vr(nb, 2)} neg_lo:[1,0,0] neg_hi:[1,0,0]")
    for i in range(16):
        k(f"v_exp_f32 v{P + i}, v{P + i}")
        k(f"v_exp_f32 v{N + i}, v{N + i}")
    k(f"v_pk_add_f32 {vr(na, 2)}, {vr(P, 2)}, {vr(P + 2, 2)}")
    k(f"v_pk_add_f32 {vr(nb, 2)}, {vr(N, 2)}, {vr(N + 2, 2)}")
    for i in range(4, 16, 2):
        k(f"v_pk_add_f32 {vr(na, 2)}, {vr(na, 2)}, {vr(P + i, 2)}")
        k(f"v_pk_add_f32 {vr(nb, 2)}, {vr(nb, 2)}, {vr(N + i, 2)}")
    k(f"v_add_f32 v{mx}, v{na}, v{na + 1}")
    k(f"v_add_f32 v{mn}, v{nb}, v{nb + 1}")
    half_reduce32(k, mx, t0, "add")
    half_reduce32(k, mn, t0, "add")
    k(f"v_rcp_f32 v{na}, v{mx}")
    k(f"v_rcp_f32 v{nb}, v{mn}")
    k(f"v_mov_b32 v{na + 1}, v{na}")
    k(f"v_mov_b32 v{nb + 1}, v{nb}")
    for i in range(0, 16, 2):
        k(f"v_pk_mul_f32 {vr(P + i, 2)}, {vr(P + i, 2)}, {vr(na, 2)}")
        k(f"v_pk_mul_f32 {vr(N + i, 2)}, {vr(N + i, 2)}, {vr(nb, 2)}")
    for i in range(8):
        k(f"v_cvt_pk_bf16_f32 v{P8 + i}, v{P + 2 * i}, v{P + 2 * i + 1}")
        k(f"v_cvt_pk_bf16_f32 v{N8 + i}, v{N + 2 * i}, v{N + 2 * i + 1}")


NPART = 8


def kv_epilogue(g, AF):
    k, c, S_ = g.k, g.cfg, SG
    lane, l31, h, pw, vw, a_phi, a_v = 120, 121, 122, 123, 124, 125, 126
    KB = 64
    WSZ = 8192
    k("s_barrier")
    k(f"v_and_b32 v{lane}, 63, v{g.vtid}")
    k(f"v_mov_b32 v127, v{g.vtid}")
    k(f"v_and_b32 v{l31}, 31, v{lane}")
    k(f"v_lshrrev_b32 v{h}, 5, v{lane}")
    k(f"s_mul_i32 s{S_['t2']}, s{S_['w']}, {WSZ}")
    k(f"s_mov_b32 s58, {f32hex(LOG2E)}")
    k(f"s_mov_b32 s59, {f32hex(LOG2E)}")
    tr_addr_small(k, lane, a_phi, 112, 128)
    tr_addr_small(k, lane, a_v, 112, 64)
    k(f"v_add_u32 v{a_phi}, s{S_['t2']}, v{a_phi}")
    k(f"v_add_u32 v{a_v}, s{S_['t2']}, v{a_v}")
    k(f"v_lshlrev_b32 v{pw}, 7, v{l31}")
    k(f"v_lshl_add_u32 v{pw}, v{h}, 3, v{pw}")
    k(f"v_add_u32 v{pw}, s{S_['t2']}, v{pw}")
    k(f"v_lshlrev_b32 v{vw}, 6, v{l31}")
    k(f"v_lshl_add_u32 v{vw}, v{h}, 3, v{vw}")
    k(f"v_add_u32 v{vw}, s{S_['t2']}, v{vw}")
    for rb in range(2):
        a = g.accr(0, rb)
        for i in range(8):
            k(f"v_cvt_pk_bf16_f32 v{KB + rb * 8 + i}, v{a + 2 * i}, v{a + 2 * i + 1}")
    VP = 80
    for rb in range(2):
        a = g.accr(1, rb)
        for i in range(8):
            k(f"v_cvt_pk_bf16_f32 v{VP + i}, v{a + 2 * i}, v{a + 2 * i + 1}")
        for q in range(4):
            k(f"ds_write_b64 v{vw}, {vr(VP + 2 * q, 2)} offset:{4096 + rb * 2048 + q * 16}")
    AZ, AKV = 0, 128
    T, R, P8, N8, TMP = 32, 80, 48, 56, 112
    PF, VF, ones = 32, 40, 80
    for i in range(32):
        k(f"v_mov_b32 v{AZ + i}, 0")
        k(f"v_mov_b32 v{AKV + i}, 0")
    k("s_waitcnt vmcnt(0)")
    for rb in range(2):
        k(f"v_mfma_f32_32x32x16_bf16 {vr(T, 16)}, {vr(AF, 4)}, {vr(KB + rb * 8, 4)}, 0")
        k(f"v_mfma_f32_32x32x16_bf16 {vr(T, 16)}, {vr(AF + 4, 4)}, {vr(KB + rb * 8 + 4, 4)}, {vr(T, 16)}")
        for i in range(0, 16, 2):
            bf16r2(k, T + i, T + i + 1, TMP)
        phi_softmax2(k, T, P8, N8, R, TMP)
        for i in range(4):
            k(f"v_mov_b32 v{ones + i}, 0x3f803f80")
        for q in range(4):
            k(f"ds_write_b64 v{pw}, {vr(P8 + 2 * q, 2)} offset:{q * 16}")
            k(f"ds_write_b64 v{pw}, {vr(N8 + 2 * q, 2)} offset:{64 + q * 16}")
        k("s_waitcnt lgkmcnt(0)")
        for kk in range(2):
            for fb in range(2):
                for j in range(2):
                    k(f"ds_read_b64_tr_b16 {vr(PF + fb * 4 + j * 2, 2)}, v{a_phi} offset:{(kk * 16 + j * 4) * 128 + fb * 64}")
            for j in range(2):
                k(f"ds_read_b64_tr_b16 {vr(VF + j * 2, 2)}, v{a_v} offset:{4096 + rb * 2048 + (kk * 16 + j * 4) * 64}")
            k("s_waitcnt lgkmcnt(0)")
            for fb in range(2):
                k(f"v_mfma_f32_32x32x16_bf16 {vr(AKV + fb * 16, 16)}, {vr(PF + fb * 4, 4)}, {vr(VF, 4)}, {vr(AKV + fb * 16, 16)}")
                k(f"v_mfma_f32_32x32x16_bf16 {vr(AZ + fb * 16, 16)}, {vr(PF + fb * 4, 4)}, {vr(ones, 4)}, {vr(AZ + fb * 16, 16)}")
    k("s_barrier")
    RED, ZRED = 0, 65536
    ra = 32
    k(f"v_lshlrev_b32 v{ra}, 2, v{l31}")
    k(f"v_lshl_add_u32 v{ra}, v{h}, 9, v{ra}")
    k(f"s_lshl_b32 s{S_['t0']}, s{S_['w']}, 13")
    k(f"v_add_u32 v{ra}, s{S_['t0']}, v{ra}")
    for fb in range(2):
        for v in range(16):
            F = fb * 32 + (v & 3) + 8 * (v >> 2)
            k(f"ds_write_b32 v{ra}, v{AKV + fb * 16 + v} offset:{RED + F * 128}")
    za = 33
    k(f"v_lshlrev_b32 v{za}, 4, v{h}")
    k(f"s_lshl_b32 s{S_['t0']}, s{S_['w']}, 8")
    k(f"v_add_u32 v{za}, s{S_['t0']}, v{za}")
    k(f"v_add_u32 v{za}, {ZRED}, v{za}")
    k(f"v_cmp_eq_u32 vcc, 0, v{l31}")
    k("s_and_saveexec_b64 s[56:57], vcc")
    for fb in range(2):
        for v in range(16):
            F = fb * 32 + (v & 3) + 8 * (v >> 2)
            k(f"ds_write_b32 v{za}, v{AZ + fb * 16 + v} offset:{F * 4}")
    k("s_mov_b64 exec, s[56:57]")
    k("s_waitcnt lgkmcnt(0)")
    k("s_barrier")
    tid = 127
    hd, tp = 34, 35
    k(f"v_lshrrev_b32 v{hd}, 8, v{tid}")
    k(f"v_and_b32 v{tp}, 255, v{tid}")
    so = 36
    k(f"s_lshl_b32 s{S_['t0']}, s{S_['tn']}, 4")
    k(f"s_add_u32 s{S_['t0']}, s{S_['t0']}, s{S_['tm']}")
    k(f"s_mul_i32 s{S_['t0']}, s{S_['t0']}, {KVP_BYTES}")
    k(f"v_mul_u32_u24 v{so}, {8 * KVP_BYTES}, v{hd}")
    zs = 37
    k(f"v_mov_b32 v{zs}, v{so}")
    k(f"v_lshl_add_u32 v{so}, v{tp}, 4, v{so}")
    for it in range(2):
        F0, x, ad = 40, 41, 42
        k(f"v_lshrrev_b32 v{F0}, 7, v{tp}")
        k(f"v_lshlrev_b32 v{F0}, 4, v{F0}")
        if it:
            k(f"v_add_u32 v{F0}, 32, v{F0}")
        k(f"v_and_b32 v{x}, 1, v{tp}")
        k(f"v_lshl_add_u32 v{F0}, v{x}, 3, v{F0}")
        k(f"v_bfe_u32 v{x}, v{tp}, 6, 1")
        k(f"v_lshl_add_u32 v{F0}, v{x}, 2, v{F0}")
        k(f"v_lshlrev_b32 v{ad}, 7, v{F0}")
        k(f"v_bfe_u32 v{x}, v{tp}, 1, 5")
        k(f"v_lshl_add_u32 v{ad}, v{x}, 2, v{ad}")
        k(f"v_lshl_add_u32 v{ad}, v{hd}, 13, v{ad}")
        for wm in range(4):
            for i in range(4):
                k(f"ds_read_b32 v{48 + wm * 4 + i}, v{ad} offset:{RED + wm * 16384 + i * 128}")
        k("s_waitcnt lgkmcnt(0)")
        for i in range(4):
            k(f"v_add_f32 v{48 + i}, v{48 + i}, v{52 + i}")
            k(f"v_add_f32 v{56 + i}, v{56 + i}, v{60 + i}")
            k(f"v_add_f32 v{44 + i}, v{48 + i}, v{56 + i}")
        if it:
            k(f"v_add_u32 v{so}, 4096, v{so}")
        k(f"buffer_store_dwordx4 v[44:47], v{so}, {sr(S_['srdO'], 4)}, s{S_['t0']} offen")
    k(f"v_cmp_gt_u32 vcc, 128, v{tid}")
    k("s_and_saveexec_b64 s[56:57], vcc")
    Lz = k.newlabel("kvz")
    k(f"s_cbranch_execz {Lz}")
    k(f"v_lshrrev_b32 v{hd}, 6, v{tid}")
    k(f"v_and_b32 v{tp}, 63, v{tid}")
    k(f"v_lshlrev_b32 v40, 2, v{tp}")
    k(f"v_lshl_add_u32 v40, v{hd}, 8, v40")
    k(f"v_add_u32 v40, {ZRED}, v40")
    for wm in range(4):
        k(f"ds_read_b32 v{48 + wm}, v40 offset:{wm * 512}")
    k("s_waitcnt lgkmcnt(0)")
    k("v_add_f32 v48, v48, v49")
    k("v_add_f32 v50, v50, v51")
    k("v_add_f32 v48, v48, v50")
    k(f"v_lshrrev_b32 v41, 4, v{tp}")
    k(f"v_bfe_u32 v42, v{tp}, 2, 1")
    k("v_lshl_add_u32 v41, v41, 1, v42")
    k("v_lshlrev_b32 v41, 3, v41")
    k(f"v_bfe_u32 v42, v{tp}, 3, 1")
    k("v_lshl_add_u32 v41, v42, 2, v41")
    k(f"v_and_b32 v42, 3, v{tp}")
    k("v_add_u32 v41, v41, v42")
    k("v_lshlrev_b32 v41, 2, v41")
    k(f"v_mul_u32_u24 v42, {8 * KVP_BYTES}, v{hd}")
    k("v_add_u32 v41, v41, v42")
    k("v_add_u32 v41, 8192, v41")
    k(f"buffer_store_dword v48, v41, {sr(S_['srdO'], 4)}, s{S_['t0']} offen")
    k.label(Lz)
    k("s_endpgm")


def gen_l1():
    cfg = GemmCfg()
    k = Kernel("l1_kernel")
    S_ = SG
    g = GemmGen(k, cfg, S_)
    AF = 160
    assert g.tmp + 8 <= AF
    nt = (S // cfg.BM) * 32
    Lend = k.newlabel("end"); Lw1 = k.newlabel("w1"); Lkv = k.newlabel("kv")
    k(f"s_cmp_ge_u32 s2, {nt}")
    k(f"s_cbranch_scc1 {Lend}")
    xcd_decode(k)
    xcd_tile(k, 2, 4, 8)
    k(f"s_cmp_ge_u32 s{S_['tn']}, 24")
    k(f"s_cbranch_scc1 {Lw1}")
    k(f"s_cmp_ge_u32 s{S_['tn']}, 8")
    k(f"s_cbranch_scc1 {Lkv}")
    gemm_setup(k, g, cfg, "A_x", 0, S * D * 2, "wqkv", D * 3072 * 2, WS_QKV, S * D * 2, 2048, 6144, D // 64)
    g.mainloop()
    epilogue_lds(g, 2048)
    k("s_endpgm")
    k.label(Lkv)
    k(f"s_sub_u32 s{S_['tn']}, s{S_['tn']}, 8")
    load_ptr(k, 60, "w_phi")
    gemm_setup(k, g, cfg, "A_x", 0, S * D * 2, "wqkv", D * 3072 * 2, WS_KV, 32 * NPART * KVP_BYTES, 2048, 6144, D // 64, bmap='kv')
    srd(k, S_['srdX'], 60, 32 * 32 * 32 * 2)
    t = g.tmp
    k(f"v_and_b32 v{t}, 31, v{g.vtid}")
    k(f"v_bfe_u32 v{t + 1}, v{g.vtid}, 5, 1")
    k(f"v_lshlrev_b32 v{t}, 1, v{t}")
    k(f"v_lshl_add_u32 v{t}, v{t + 1}, 8, v{t}")
    k(f"s_lshl_b32 s{S_['t0']}, s{S_['tn']}, 1")
    k(f"s_add_u32 s{S_['t0']}, s{S_['t0']}, s{S_['wn']}")
    k(f"s_lshl_b32 s{S_['t0']}, s{S_['t0']}, 11")
    LT = g.fx[0]
    for kk in range(2):
        for e in range(8):
            doff = 8 * (2 * kk + (e >> 2)) + (e & 3)
            k(f"buffer_load_ushort v{LT + kk * 8 + e}, v{t}, {sr(S_['srdX'], 4)}, s{S_['t0']} offen offset:{doff * 64}")
    k("s_waitcnt vmcnt(0)")
    for i in range(8):
        k(f"v_lshl_or_b32 v{AF + i}, v{LT + 2 * i + 1}, 16, v{LT + 2 * i}")
    g.mainloop()
    kv_epilogue(g, AF)
    k.label(Lw1)
    k(f"s_sub_u32 s{S_['tn']}, s{S_['tn']}, 24")
    gemm_setup(k, g, cfg, "ws", WS_XN1, S * D * 2, "w1", D * D * 2, WS_H, S * D * 2, 2048, 2048, D // 64)
    gelu_consts(k)
    g.mainloop()

    def hook(g, ctx, cb, rb, a):
        gelu_block(k, a, 16, ctx['free'])
    free = epilogue_lds(g, 2048, hook=hook)
    k.label(Lend)
    k("s_endpgm")
    return k, 168, nt, cfg.lds, cfg.nthreads


def w2_role(k, g, cfg, base):
    S_ = SG
    tile_decode(k, 1024 // cfg.BN, base)
    sh = [-1, 1, -2, 2]
    def adv(k):
        k(f"s_add_u32 s{S_['koffA']}, s{S_['koffA']}, 128")
        k(f"s_add_u32 s{S_['koffB']}, s{S_['koffB']}, {64 * 2048}")
        k(f"s_add_u32 s{S_['t6']}, s{S_['t6']}, 1")
        for q in range(1, 4):
            d = (sh[q] - sh[q - 1]) * 2048
            k(f"s_cmp_eq_u32 s{S_['t6']}, {4 * q}")
            k(f"s_cselect_b32 s{S_['t3']}, {d & 0xffffffff}, 0")
            k(f"s_add_u32 s{S_['koffA']}, s{S_['koffA']}, s{S_['t3']}")
    k(f"s_mov_b32 s{S_['t6']}, 0")
    gemm_setup(k, g, cfg, "ws", WS_HG, 4096 + S * D * 2 + 4096, "w2", D * D * 2, WS_X1, S * D * 2, 2048, 2048, D // 64,
               koffA0=(2 + sh[0]) * 2048, adv=adv)
    load_ptr(k, 4, "A_x")
    k("s_waitcnt lgkmcnt(0)")
    srd(k, S_['srdX'], 4, S * D * 2)
    srd(k, S_['srdY'], S_['ws'], S * 128, WS_ST)
    g.mainloop()

    st = {}
    def pre(g, ctx):
        f = ctx['free']
        st['xoff'] = f; st['xr'] = f + 4; st['s1'] = f + 12; st['s2'] = f + 13; st['t'] = f + 14; st['so'] = f + 15
        k(f"v_add_u32 v{f}, s{ctx['row0']}, v{ctx['l31']}")
        k(f"v_lshlrev_b32 v{f}, 11, v{f}")
        k(f"v_lshl_add_u32 v{f}, v{ctx['h']}, 3, v{f}")
        k(f"s_lshl_b32 s{S_['t0']}, s{ctx['col0']}, 1")
        k(f"v_add_u32 v{f}, s{S_['t0']}, v{f}")
        k(f"s_mov_b32 s{S_['t1']}, {32 * 2048}")
        so = st['so']
        k(f"v_add_u32 v{so}, s{ctx['row0']}, v{ctx['l31']}")
        k(f"v_lshlrev_b32 v{so}, 7, v{so}")
        k(f"s_lshr_b32 s{S_['t0']}, s{ctx['col0']}, 3")
        k(f"v_add_u32 v{so}, s{S_['t0']}, v{so}")

    def hook(g, ctx, cb, rb, a):
        xr, t = st['xr'], st['t']
        soff = "0" if rb == 0 else f"s{S_['t1']}"
        for q in range(4):
            k(f"buffer_load_dwordx2 {vr(xr + 2 * q, 2)}, v{st['xoff']}, {sr(S_['srdX'], 4)}, {soff} offen offset:{cb * 64 + q * 16}")
        if cb == 0:
            k(f"v_mov_b32 v{st['s1']}, 0")
            k(f"v_mov_b32 v{st['s2']}, 0")
        for i in range(0, 16, 2):
            bf16r2(k, a + i, a + i + 1, t)
        k("s_waitcnt vmcnt(0)")
        for q in range(4):
            for j in range(2):
                i = a + 4 * q + 2 * j
                k(f"v_lshlrev_b32 v{t}, 16, v{xr + 2 * q + j}")
                k(f"v_add_f32 v{i}, v{i}, v{t}")
                k(f"v_and_b32 v{t}, 0xffff0000, v{xr + 2 * q + j}")
                k(f"v_add_f32 v{i + 1}, v{i + 1}, v{t}")
        for i in range(0, 16, 2):
            bf16r2(k, a + i, a + i + 1, t)
        for i in range(16):
            k(f"v_add_f32 v{st['s1']}, v{st['s1']}, v{a + i}")
            k(f"v_fmac_f32 v{st['s2']}, v{a + i}, v{a + i}")
        if cb == cfg.NB - 1:
            half_reduce32(k, st['s1'], t, "add")
            half_reduce32(k, st['s2'], t, "add")
            k(f"v_cmp_gt_u32 vcc, 32, v{ctx['lane']}")
            k("s_and_saveexec_b64 s[56:57], vcc")
            so = st['so']
            k(f"buffer_store_dwordx2 {vr(st['s1'], 2)}, v{so}, {sr(S_['srdY'], 4)}, 0 offen")
            k("s_mov_b64 exec, s[56:57]")
            k(f"v_add_u32 v{so}, 4096, v{so}")
    epilogue_lds(g, 2048, hook=hook, pre=pre)
    k("s_endpgm")


def cs3_role(k, base):
    S_ = SG
    load_ptr(k, S_['ws'], "ws")
    load_ptr(k, 6, "w3")
    k("s_waitcnt lgkmcnt(0)")
    srd(k, S_['srdB'], 6, D * 3584 * 2)
    srd(k, S_['srdO'], S_['ws'], 3584 * 4, WS_CS3)
    k(f"s_sub_u32 s{S_['id']}, s{S_['jj']}, {base}")
    k(f"s_lshl_b32 s{S_['id']}, s{S_['id']}, 3")
    k(f"s_add_u32 s{S_['id']}, s{S_['id']}, s{S_['xx']}")
    k("v_cmp_gt_u32 vcc, 512, v0")
    k("s_and_saveexec_b64 s[56:57], vcc")
    Lx = k.newlabel("csx")
    k(f"s_cbranch_execz {Lx}")
    k("v_and_b32 v1, 15, v0")
    k("v_lshrrev_b32 v2, 4, v0")
    k(f"s_mov_b32 s{S_['t0']}, {32 * 7168}")
    k(f"v_mul_lo_u32 v3, v2, s{S_['t0']}")
    k("v_lshl_add_u32 v3, v1, 4, v3")
    k(f"s_lshl_b32 s{S_['t1']}, s{S_['id']}, 8")
    for i in range(8):
        k(f"v_mov_b32 v{8 + i}, 0")
    for r in range(0, 32, 4):
        for j in range(4):
            k(f"buffer_load_dwordx4 {vr(16 + 4 * j, 4)}, v3, {sr(S_['srdB'], 4)}, s{S_['t1']} offen")
            k(f"v_add_u32 v3, 7168, v3")
        k("s_waitcnt vmcnt(0)")
        for j in range(4):
            unpack8(k, 16 + 4 * j, 32)
            for i in range(8):
                k(f"v_add_f32 v{8 + i}, v{8 + i}, v{32 + i}")
    k("v_lshlrev_b32 v4, 9, v2")
    k("v_lshl_add_u32 v4, v1, 5, v4")
    k("ds_write_b128 v4, v[8:11]")
    k("ds_write_b128 v4, v[12:15] offset:16")
    k("s_waitcnt lgkmcnt(0)")
    k.label(Lx)
    k("s_mov_b64 exec, s[56:57]")
    k("s_barrier")
    k("v_cmp_gt_u32 vcc, 128, v0")
    k("s_and_saveexec_b64 s[56:57], vcc")
    Ly = k.newlabel("csy")
    k(f"s_cbranch_execz {Ly}")
    k("v_lshlrev_b32 v4, 2, v0")
    k("v_mov_b32 v5, 0")
    for r in range(32):
        k(f"ds_read_b32 v6, v4 offset:{r * 512}")
        k("s_waitcnt lgkmcnt(0)")
        k("v_add_f32 v5, v5, v6")
    k(f"s_lshl_b32 s{S_['t1']}, s{S_['id']}, 9")
    k(f"buffer_store_dword v5, v4, {sr(S_['srdO'], 4)}, s{S_['t1']} offen")
    k.label(Ly)
    k("s_endpgm")


KVP_BYTES = 8192 + 256


def tr_addr_small(k, lane, dst, t, row_bytes, colblk_bytes=0):
    g, r_, c_ = t, t + 1, t + 2
    k(f"v_lshrrev_b32 v{g}, 4, v{lane}")
    k(f"v_and_b32 v{r_}, 15, v{lane}")
    k(f"v_lshrrev_b32 v{r_}, 2, v{r_}")
    k(f"v_and_b32 v{c_}, 3, v{lane}")
    k(f"v_lshrrev_b32 v{dst}, 1, v{g}")
    k(f"v_lshlrev_b32 v{dst}, 3, v{dst}")
    k(f"v_add_u32 v{dst}, v{dst}, v{r_}")
    k(f"v_mul_u32_u24 v{dst}, {row_bytes}, v{dst}")
    k(f"v_and_b32 v{g}, 1, v{g}")
    k(f"v_lshl_add_u32 v{dst}, v{g}, 5, v{dst}")
    k(f"v_lshl_add_u32 v{dst}, v{c_}, 3, v{dst}")


def phi_softmax(k, T, P, N, t):
    mx, mn, t0, t1 = t, t + 1, t + 2, t + 3
    k(f"v_max3_f32 v{mx}, v{T}, v{T + 1}, v{T + 2}")
    k(f"v_min3_f32 v{mn}, v{T}, v{T + 1}, v{T + 2}")
    for i in range(3, 15, 2):
        k(f"v_max3_f32 v{mx}, v{mx}, v{T + i}, v{T + i + 1}")
        k(f"v_min3_f32 v{mn}, v{mn}, v{T + i}, v{T + i + 1}")
    k(f"v_max_f32 v{mx}, v{mx}, v{T + 15}")
    k(f"v_min_f32 v{mn}, v{mn}, v{T + 15}")
    half_reduce32(k, mx, t0, "max")
    half_reduce32(k, mn, t0, "min")
    for i in range(16):
        k(f"v_sub_f32 v{N + i}, v{mn}, v{T + i}")
        k(f"v_mul_f32 v{N + i}, {f32hex(LOG2E)}, v{N + i}")
        k(f"v_exp_f32 v{N + i}, v{N + i}")
        k(f"v_sub_f32 v{P + i}, v{T + i}, v{mx}")
        k(f"v_mul_f32 v{P + i}, {f32hex(LOG2E)}, v{P + i}")
        k(f"v_exp_f32 v{P + i}, v{P + i}")
    k(f"v_add_f32 v{mx}, v{P}, v{P + 1}")
    k(f"v_add_f32 v{mn}, v{N}, v{N + 1}")
    for i in range(2, 16):
        k(f"v_add_f32 v{mx}, v{mx}, v{P + i}")
        k(f"v_add_f32 v{mn}, v{mn}, v{N + i}")
    half_reduce32(k, mx, t0, "add")
    half_reduce32(k, mn, t0, "add")
    k(f"v_rcp_f32 v{mx}, v{mx}")
    k(f"v_rcp_f32 v{mn}, v{mn}")
    for i in range(16):
        k(f"v_mul_f32 v{P + i}, v{P + i}, v{mx}")
        k(f"v_mul_f32 v{N + i}, v{N + i}, v{mn}")


def kside_role(k, base):
    S_ = SG
    Lx = k.newlabel("ksx")
    load_ptr(k, S_['ws'], "ws")
    load_ptr(k, 6, "w_phi")
    k("v_lshrrev_b32 v1, 6, v0")
    k(f"v_readfirstlane_b32 s{S_['w']}, v1")
    k(f"s_cmp_ge_u32 s{S_['w']}, 8")
    k(f"s_cbranch_scc1 {Lx}")
    k(f"s_sub_u32 s{S_['id']}, s{S_['jj']}, {base}")
    k(f"s_lshl_b32 s{S_['id']}, s{S_['id']}, 3")
    k(f"s_add_u32 s{S_['id']}, s{S_['id']}, s{S_['xx']}")
    k(f"s_mov_b32 s{S_['t5']}, s{S_['id']}")
    k(f"s_and_b32 s{S_['t6']}, s{S_['id']}, 1")
    k(f"s_lshr_b32 s{S_['id']}, s{S_['id']}, 1")
    k("s_waitcnt lgkmcnt(0)")
    srd(k, S_['srdA'], S_['ws'], S * 3072 * 2, WS_QKV)
    srd(k, S_['srdB'], 6, 32 * 32 * 32 * 2)
    srd(k, S_['srdO'], S_['ws'], 64 * KVP_BYTES, WS_KV)
    lane = 2
    k(f"v_and_b32 v{lane}, 63, v0")
    WREG = 4096
    WSZ = 4096 + 8192
    k("v_lshlrev_b32 v3, 4, v2")
    Lnw = k.newlabel("nw")
    k(f"s_cmp_lg_u32 s{S_['w']}, 0")
    k(f"s_cbranch_scc1 {Lnw}")
    k(f"s_lshl_b32 s{S_['t0']}, s{S_['id']}, 11")
    k("s_mov_b32 m0, 0")
    k(f"buffer_load_dwordx4 v3, {sr(S_['srdB'], 4)}, s{S_['t0']} offen lds")
    k(f"s_add_u32 s{S_['t0']}, s{S_['t0']}, 1024")
    k("s_mov_b32 m0, 1024")
    k(f"buffer_load_dwordx4 v3, {sr(S_['srdB'], 4)}, s{S_['t0']} offen lds")
    k("s_waitcnt vmcnt(0)")
    k.label(Lnw)
    a_w, a_phi, a_v = 4, 5, 6
    tr_addr_small(k, lane, a_w, 10, 64)
    tr_addr_small(k, lane, a_phi, 10, 128)
    tr_addr_small(k, lane, a_v, 10, 64)
    k(f"s_mul_i32 s{S_['t2']}, s{S_['w']}, {WSZ}")
    k(f"s_add_u32 s{S_['t2']}, s{S_['t2']}, {WREG}")
    k(f"v_add_u32 v{a_phi}, s{S_['t2']}, v{a_phi}")
    k(f"v_add_u32 v{a_v}, s{S_['t2']}, v{a_v}")
    k(f"v_add_u32 v{a_v}, 4096, v{a_v}")
    l31, h = 7, 8
    k(f"v_and_b32 v{l31}, 31, v{lane}")
    k(f"v_lshrrev_b32 v{h}, 5, v{lane}")
    k(f"s_lshl_b32 s{S_['t0']}, s{S_['t6']}, 10")
    k(f"s_lshl_b32 s{S_['t1']}, s{S_['w']}, 7")
    k(f"s_add_u32 s{S_['t4']}, s{S_['t0']}, s{S_['t1']}")
    koff = 9
    k(f"v_add_u32 v{koff}, s{S_['t4']}, v{l31}")
    k(f"s_mov_b32 s{S_['t1']}, 6144")
    k(f"v_mul_lo_u32 v{koff}, v{koff}, s{S_['t1']}")
    k(f"v_lshl_add_u32 v{koff}, v{h}, 4, v{koff}")
    k(f"s_lshl_b32 s{S_['t0']}, s{S_['id']}, 6")
    k(f"s_add_u32 s{S_['t0']}, s{S_['t0']}, 2048")
    k(f"v_add_u32 v{koff}, s{S_['t0']}, v{koff}")
    voff = 10
    k(f"v_lshrrev_b32 v{voff}, 2, v{lane}")
    k(f"v_add_u32 v{voff}, s{S_['t4']}, v{voff}")
    k(f"v_mul_lo_u32 v{voff}, v{voff}, s{S_['t1']}")
    k(f"v_and_b32 v11, 3, v{lane}")
    k(f"v_lshl_add_u32 v{voff}, v11, 4, v{voff}")
    k(f"s_add_u32 s{S_['t0']}, s{S_['t0']}, 2048")
    k(f"v_add_u32 v{voff}, s{S_['t0']}, v{voff}")
    pw = 11
    k(f"v_lshlrev_b32 v{pw}, 7, v{l31}")
    k(f"v_lshl_add_u32 v{pw}, v{h}, 3, v{pw}")
    k(f"v_add_u32 v{pw}, s{S_['t2']}, v{pw}")
    ones = 24
    for i in range(4):
        k(f"v_mov_b32 v{ones + i}, 0x3f803f80")
    KF = 28
    for b in range(4):
        k(f"buffer_load_dwordx4 {vr(KF + 8 * b, 4)}, v{koff}, {sr(S_['srdA'], 4)}, 0 offen")
        k(f"buffer_load_dwordx4 {vr(KF + 8 * b + 4, 4)}, v{koff}, {sr(S_['srdA'], 4)}, 0 offen offset:32")
        if b != 3:
            k(f"v_add_u32 v{koff}, {32 * 6144}, v{koff}")
    for b in range(8):
        k(f"s_add_u32 m0, s{S_['t2']}, {4096 + 1024 * b}")
        k(f"buffer_load_dwordx4 v{voff}, {sr(S_['srdA'], 4)}, 0 offen lds")
        if b != 7:
            k(f"v_add_u32 v{voff}, {16 * 6144}, v{voff}")
    T, N, TMP = 60, 76, 92
    P = T
    PF, VF = 68, 84
    AKV, AZ = 96, 128
    for i in range(64):
        k(f"v_mov_b32 v{AKV + i}, 0")
    k("s_barrier")
    for kk in range(2):
        for j in range(2):
            k(f"ds_read_b64_tr_b16 {vr(16 + kk * 4 + j * 2, 2)}, v{a_w} offset:{(kk * 16 + j * 4) * 64}")
    k("s_waitcnt vmcnt(0) lgkmcnt(0)")
    for b in range(4):
        k(f"v_mfma_f32_32x32x16_bf16 {vr(T, 16)}, {vr(16, 4)}, {vr(KF + 8 * b, 4)}, 0")
        k(f"v_mfma_f32_32x32x16_bf16 {vr(T, 16)}, {vr(20, 4)}, {vr(KF + 8 * b + 4, 4)}, {vr(T, 16)}")
        for i in range(0, 16, 2):
            bf16r2(k, T + i, T + i + 1, TMP)
        phi_softmax(k, T, P, N, TMP)
        for i in range(8):
            k(f"v_cvt_pk_bf16_f32 v{P + i}, v{P + 2 * i}, v{P + 2 * i + 1}")
            k(f"v_cvt_pk_bf16_f32 v{N + i}, v{N + 2 * i}, v{N + 2 * i + 1}")
        for q in range(4):
            k(f"ds_write_b64 v{pw}, {vr(P + 2 * q, 2)} offset:{q * 16}")
            k(f"ds_write_b64 v{pw}, {vr(N + 2 * q, 2)} offset:{64 + q * 16}")
        k("s_waitcnt lgkmcnt(0)")
        for kk in range(2):
            for fb in range(2):
                for j in range(2):
                    k(f"ds_read_b64_tr_b16 {vr(PF + fb * 4 + j * 2, 2)}, v{a_phi} offset:{(kk * 16 + j * 4) * 128 + fb * 64}")
            for j in range(2):
                k(f"ds_read_b64_tr_b16 {vr(VF + j * 2, 2)}, v{a_v} offset:{b * 2048 + (kk * 16 + j * 4) * 64}")
            k("s_waitcnt lgkmcnt(0)")
            for fb in range(2):
                k(f"v_mfma_f32_32x32x16_bf16 {vr(AKV + fb * 16, 16)}, {vr(PF + fb * 4, 4)}, {vr(VF, 4)}, {vr(AKV + fb * 16, 16)}")
                k(f"v_mfma_f32_32x32x16_bf16 {vr(AZ + fb * 16, 16)}, {vr(PF + fb * 4, 4)}, {vr(ones, 4)}, {vr(AZ + fb * 16, 16)}")
    k("s_barrier")
    RED, ZRED = 4096, 4096 + 65536
    ra = 4
    k(f"v_lshlrev_b32 v{ra}, 2, v{l31}")
    k(f"v_lshl_add_u32 v{ra}, v{h}, 9, v{ra}")
    k(f"s_lshl_b32 s{S_['t0']}, s{S_['w']}, 13")
    k(f"v_add_u32 v{ra}, s{S_['t0']}, v{ra}")
    k(f"v_add_u32 v{ra}, {RED}, v{ra}")
    for fb in range(2):
        for v in range(16):
            F = fb * 32 + (v & 3) + 8 * (v >> 2)
            k(f"ds_write_b32 v{ra}, v{AKV + fb * 16 + v} offset:{F * 128}")
    za = 5
    k(f"v_lshlrev_b32 v{za}, 4, v{h}")
    k(f"s_lshl_b32 s{S_['t0']}, s{S_['w']}, 8")
    k(f"v_add_u32 v{za}, s{S_['t0']}, v{za}")
    k(f"v_add_u32 v{za}, {ZRED}, v{za}")
    k(f"v_cmp_eq_u32 vcc, 0, v{l31}")
    k("s_and_saveexec_b64 s[56:57], vcc")
    for fb in range(2):
        for v in range(16):
            F = fb * 32 + (v & 3) + 8 * (v >> 2)
            k(f"ds_write_b32 v{za}, v{AZ + fb * 16 + v} offset:{F * 4}")
    k("s_mov_b64 exec, s[56:57]")
    k("s_waitcnt lgkmcnt(0)")
    k("s_barrier")
    jj, hh, dd, hf = 6, 7, 8, 9
    k(f"v_lshrrev_b32 v{jj}, 7, v0")
    k(f"v_bfe_u32 v{hh}, v0, 6, 1")
    k(f"v_bfe_u32 v{dd}, v0, 1, 5")
    k(f"v_and_b32 v{hf}, 1, v0")
    F0 = 10
    k(f"v_lshlrev_b32 v{F0}, 4, v{jj}")
    k(f"v_lshl_add_u32 v{F0}, v{hf}, 3, v{F0}")
    k(f"v_lshl_add_u32 v{F0}, v{hh}, 2, v{F0}")
    ad = 11
    k(f"v_lshlrev_b32 v{ad}, 7, v{F0}")
    k(f"v_lshl_add_u32 v{ad}, v{dd}, 2, v{ad}")
    k(f"v_add_u32 v{ad}, {RED}, v{ad}")
    for i in range(4):
        k(f"v_mov_b32 v{12 + i}, 0")
    for w in range(8):
        for i in range(4):
            k(f"ds_read_b32 v{16 + i}, v{ad} offset:{i * 128}")
        k(f"v_add_u32 v{ad}, 8192, v{ad}")
        k("s_waitcnt lgkmcnt(0)")
        for i in range(4):
            k(f"v_add_f32 v{12 + i}, v{12 + i}, v{16 + i}")
    so = 22
    k(f"v_lshrrev_b32 v{so}, 6, v0")
    k(f"v_lshlrev_b32 v{so}, 10, v{so}")
    k(f"v_lshl_add_u32 v{so}, v{dd}, 5, v{so}")
    k(f"v_lshl_add_u32 v{so}, v{hf}, 4, v{so}")
    k(f"s_mul_i32 s{S_['t0']}, s{S_['t5']}, {KVP_BYTES}")
    k(f"buffer_store_dwordx4 v[12:15], v{so}, {sr(S_['srdO'], 4)}, s{S_['t0']} offen")
    k("v_cmp_gt_u32 vcc, 64, v0")
    k("s_and_saveexec_b64 s[56:57], vcc")
    Lz = k.newlabel("ksz")
    k(f"s_cbranch_execz {Lz}")
    k("v_lshlrev_b32 v11, 2, v0")
    k(f"v_add_u32 v11, {ZRED}, v11")
    k("v_mov_b32 v12, 0")
    for w in range(8):
        k(f"ds_read_b32 v16, v11 offset:{w * 256}")
        k("s_waitcnt lgkmcnt(0)")
        k("v_add_f32 v12, v12, v16")
    k("v_lshrrev_b32 v13, 4, v0")
    k("v_bfe_u32 v14, v0, 2, 1")
    k("v_lshl_add_u32 v13, v13, 1, v14")
    k("v_lshlrev_b32 v13, 3, v13")
    k("v_bfe_u32 v14, v0, 3, 1")
    k("v_lshl_add_u32 v13, v14, 2, v13")
    k("v_and_b32 v14, 3, v0")
    k("v_add_u32 v13, v13, v14")
    k("v_lshlrev_b32 v13, 2, v13")
    k(f"s_add_u32 s{S_['t0']}, s{S_['t0']}, 8192")
    k(f"buffer_store_dword v12, v13, {sr(S_['srdO'], 4)}, s{S_['t0']} offen")
    k.label(Lz)
    k.label(Lx)
    k("s_endpgm")


def w3_role(k, g, cfg, base):
    S_ = SG
    tile_decode(k, 3584 // cfg.BN, base)
    gemm_setup(k, g, cfg, "ws", WS_X1, S * D * 2, "w3", D * 3584 * 2, WS_H3, S * 3584 * 2, 2048, 7168, D // 64)
    gelu_consts(k)
    srd(k, S_['srdX'], S_['ws'], S * 128, WS_ST)
    srd(k, S_['srdY'], S_['ws'], 3584 * 4, WS_CS3)
    g.mainloop()
    st = {}

    def pre(g, ctx):
        f = ctx['free']
        st['cs'] = f; st['mb'] = f + 32; st['ri'] = f + 34; st['t'] = f + 36; st['ld'] = f + 40
        o = st['t']
        k(f"v_lshlrev_b32 v{o}, 4, v{ctx['h']}")
        k(f"s_lshl_b32 s{S_['t0']}, s{ctx['col0']}, 2")
        k(f"v_add_u32 v{o}, s{S_['t0']}, v{o}")
        for cb in range(2):
            for q in range(4):
                k(f"buffer_load_dwordx4 {vr(f + (cb * 4 + q) * 4, 4)}, v{o}, {sr(S_['srdY'], 4)}, 0 offen offset:{cb * 128 + q * 32}")
        so = st['t'] + 1
        k(f"v_add_u32 v{so}, s{ctx['row0']}, v{ctx['l31']}")
        k(f"v_lshlrev_b32 v{so}, 7, v{so}")
        for rb in range(cfg.MB):
            ld = st['ld']
            for j in range(8):
                k(f"buffer_load_dwordx4 {vr(ld + 4 * j, 4)}, v{so}, {sr(S_['srdX'], 4)}, 0 offen offset:{j * 16}")
            k("s_waitcnt vmcnt(0)")
            s1, s2 = st['mb'] + rb, st['ri'] + rb
            k(f"v_add_f32 v{s1}, v{ld}, v{ld + 2}")
            k(f"v_add_f32 v{s2}, v{ld + 1}, v{ld + 3}")
            for j in range(2, 16):
                k(f"v_add_f32 v{s1}, v{s1}, v{ld + 2 * j}")
                k(f"v_add_f32 v{s2}, v{s2}, v{ld + 2 * j + 1}")
            k(f"v_mul_f32 v{s1}, {f32hex(1.0 / D)}, v{s1}")
            k(f"v_mul_f32 v{s2}, {f32hex(1.0 / D)}, v{s2}")
            tt = st['t'] + 2
            k(f"v_fma_f32 v{s2}, -v{s1}, v{s1}, v{s2}")
            k(f"v_max_f32 v{s2}, 0, v{s2}")
            bf16r2(k, s1, s2, tt)
            k(f"v_add_f32 v{s2}, {f32hex(1e-5)}, v{s2}")
            bf16r1(k, s2, tt)
            k(f"v_sqrt_f32 v{s2}, v{s2}")
            bf16r1(k, s2, tt)
            k(f"v_rcp_f32 v{s2}, v{s2}")
            if rb != cfg.MB - 1:
                k(f"v_add_u32 v{so}, 4096, v{so}")

    def hook(g, ctx, cb, rb, a):
        cs = st['cs'] + cb * 16
        for i in range(16):
            k(f"v_fma_f32 v{a + i}, -v{st['mb'] + rb}, v{cs + i}, v{a + i}")
            k(f"v_mul_f32 v{a + i}, v{a + i}, v{st['ri'] + rb}")
        gelu_block(k, a, 16, st['t'])
    epilogue_lds(g, 7168, hook=hook, pre=pre)
    k("s_endpgm")


def qside_role(k, base):
    S_ = SG
    Lx = k.newlabel("qsx")
    load_ptr(k, S_['ws'], "ws")
    load_ptr(k, 6, "w_phi")
    k("v_lshrrev_b32 v1, 6, v0")
    k(f"v_readfirstlane_b32 s{S_['w']}, v1")
    k(f"s_cmp_ge_u32 s{S_['w']}, 8")
    k(f"s_cbranch_scc1 {Lx}")
    k(f"s_sub_u32 s{S_['id']}, s2, {base}")
    k("s_waitcnt lgkmcnt(0)")
    srd(k, S_['srdA'], S_['ws'], S * D * 2, WS_QKV)
    srd(k, S_['srdB'], 6, 32 * 32 * 32 * 2)
    srd(k, S_['srdO'], S_['ws'], S * D * 2, WS_O)
    srd(k, S_['srdX'], S_['ws'], 32 * NPART * KVP_BYTES, WS_KV)
    lane = 2
    k(f"v_and_b32 v{lane}, 63, v0")
    k("v_lshlrev_b32 v3, 4, v2")
    Lnw = k.newlabel("nw")
    k(f"s_cmp_lg_u32 s{S_['w']}, 0")
    k(f"s_cbranch_scc1 {Lnw}")
    k(f"s_lshl_b32 s{S_['t0']}, s{S_['id']}, 11")
    k("s_mov_b32 m0, 0")
    k(f"buffer_load_dwordx4 v3, {sr(S_['srdB'], 4)}, s{S_['t0']} offen lds")
    k(f"s_add_u32 s{S_['t0']}, s{S_['t0']}, 1024")
    k("s_mov_b32 m0, 1024")
    k(f"buffer_load_dwordx4 v3, {sr(S_['srdB'], 4)}, s{S_['t0']} offen lds")
    k("s_waitcnt vmcnt(0)")
    k.label(Lnw)
    k("s_barrier")
    a_w = 4
    tr_addr_small(k, lane, a_w, 10, 64)
    for kk in range(2):
        for j in range(2):
            k(f"ds_read_b64_tr_b16 {vr(16 + kk * 4 + j * 2, 2)}, v{a_w} offset:{(kk * 16 + j * 4) * 64}")
    l31, h = 7, 8
    k(f"v_and_b32 v{l31}, 31, v{lane}")
    k(f"v_lshrrev_b32 v{h}, 5, v{lane}")
    koff = 9
    k(f"s_lshl_b32 s{S_['t0']}, s{S_['w']}, 8")
    k(f"v_add_u32 v{koff}, s{S_['t0']}, v{l31}")
    k(f"v_lshlrev_b32 v{koff}, 11, v{koff}")
    k(f"v_lshl_add_u32 v{koff}, v{h}, 4, v{koff}")
    k(f"s_lshl_b32 s{S_['t0']}, s{S_['id']}, 6")
    k(f"v_add_u32 v{koff}, s{S_['t0']}, v{koff}")
    ooff = 10
    k(f"s_lshl_b32 s{S_['t1']}, s{S_['w']}, 8")
    k(f"v_add_u32 v{ooff}, s{S_['t1']}, v{l31}")
    k(f"v_lshlrev_b32 v{ooff}, 11, v{ooff}")
    k(f"v_lshl_add_u32 v{ooff}, v{h}, 4, v{ooff}")
    k(f"v_add_u32 v{ooff}, s{S_['t0']}, v{ooff}")
    KVF, ZF = 24, 40
    x = 11
    k(f"v_lshlrev_b32 v{x}, 10, v{h}")
    k(f"v_lshl_add_u32 v{x}, v{l31}, 5, v{x}")
    k(f"s_mul_i32 s{S_['t0']}, s{S_['id']}, {NPART * KVP_BYTES}")
    LA, LB, LZ = 72, 104, 136
    x2, xz = 12, 13
    k(f"v_add_u32 v{x2}, 4096, v{x}")
    k(f"v_lshlrev_b32 v{xz}, 5, v{h}")
    k(f"v_add_u32 v{xz}, 8192, v{xz}")
    for p in range(NPART):
        dk = LA if p == 0 else LB
        dz = ZF if p == 0 else LZ
        for jj in range(4):
            for j in range(2):
                k(f"buffer_load_dwordx4 {vr(dk + jj * 8 + j * 4, 4)}, v{x if jj < 2 else x2}, {sr(S_['srdX'], 4)}, s{S_['t0']} offen offset:{(jj & 1) * 2048 + j * 16}")
        for jj in range(4):
            for j in range(2):
                k(f"buffer_load_dwordx4 {vr(dz + jj * 8 + j * 4, 4)}, v{xz}, {sr(S_['srdX'], 4)}, s{S_['t0']} offen offset:{jj * 64 + j * 16}")
        if p != NPART - 1:
            k(f"s_add_u32 s{S_['t0']}, s{S_['t0']}, {KVP_BYTES}")
        if p:
            k("s_waitcnt vmcnt(0)")
            for i in range(32):
                k(f"v_add_f32 v{LA + i}, v{LA + i}, v{LB + i}")
                k(f"v_add_f32 v{ZF + i}, v{ZF + i}, v{LZ + i}")
    for i in range(16):
        k(f"v_cvt_pk_bf16_f32 v{KVF + i}, v{LA + 2 * i}, v{LA + 2 * i + 1}")
    for i in range(0, 32, 2):
        bf16r2(k, ZF + i, ZF + i + 1, LA)
    KF, T, P, N, TMP = 72, 80, 96, 112, 128
    NUM = 132
    k(f"s_mov_b32 s{S_['cnt']}, 8")
    Lloop = k.newlabel("qsl")
    k.label(Lloop)
    k(f"buffer_load_dwordx4 {vr(KF, 4)}, v{koff}, {sr(S_['srdA'], 4)}, 0 offen")
    k(f"buffer_load_dwordx4 {vr(KF + 4, 4)}, v{koff}, {sr(S_['srdA'], 4)}, 0 offen offset:32")
    k(f"v_add_u32 v{koff}, {32 * 2048}, v{koff}")
    k("s_waitcnt vmcnt(0) lgkmcnt(0)")
    k(f"v_mfma_f32_32x32x16_bf16 {vr(T, 16)}, {vr(16, 4)}, {vr(KF, 4)}, 0")
    k(f"v_mfma_f32_32x32x16_bf16 {vr(T, 16)}, {vr(20, 4)}, {vr(KF + 4, 4)}, {vr(T, 16)}")
    for i in range(0, 16, 2):
        bf16r2(k, T + i, T + i + 1, TMP)
    phi_softmax(k, T, P, N, TMP)
    for i in range(8):
        k(f"v_cvt_pk_bf16_f32 v{T + i}, v{P + 2 * i}, v{P + 2 * i + 1}")
        k(f"v_cvt_pk_bf16_f32 v{T + 8 + i}, v{N + 2 * i}, v{N + 2 * i + 1}")
    k(f"v_mfma_f32_32x32x16_bf16 {vr(NUM, 16)}, {vr(KVF, 4)}, {vr(T, 4)}, 0")
    for jj in range(1, 4):
        k(f"v_mfma_f32_32x32x16_bf16 {vr(NUM, 16)}, {vr(KVF + 4 * jj, 4)}, {vr(T + 4 * jj, 4)}, {vr(NUM, 16)}")
    den = TMP
    k(f"v_mov_b32 v{den}, 0")
    for i in range(16):
        k(f"v_lshlrev_b32 v{TMP + 1}, 16, v{T + i}")
        k(f"v_fmac_f32 v{den}, v{TMP + 1}, v{ZF + 2 * i}")
        k(f"v_and_b32 v{TMP + 1}, 0xffff0000, v{T + i}")
        k(f"v_fmac_f32 v{den}, v{TMP + 1}, v{ZF + 2 * i + 1}")
    half_reduce32(k, den, TMP + 1, "add")
    bf16r1(k, den, TMP + 1)
    k(f"v_add_f32 v{den}, {f32hex(1e-6)}, v{den}")
    bf16r1(k, den, TMP + 1)
    k(f"v_rcp_f32 v{den}, v{den}")
    for i in range(0, 16, 2):
        bf16r2(k, NUM + i, NUM + i + 1, TMP + 1)
    for i in range(16):
        k(f"v_mul_f32 v{NUM + i}, v{NUM + i}, v{den}")
    for q in range(4):
        k(f"v_cvt_pk_bf16_f32 v{P + 2 * q}, v{NUM + 4 * q}, v{NUM + 4 * q + 1}")
        k(f"v_cvt_pk_bf16_f32 v{P + 2 * q + 1}, v{NUM + 4 * q + 2}, v{NUM + 4 * q + 3}")
    for q in (0, 2):
        k(f"v_permlane32_swap_b32 v{P + 2 * q}, v{P + 2 * q + 2}")
        k(f"v_permlane32_swap_b32 v{P + 2 * q + 1}, v{P + 2 * q + 3}")
    k(f"buffer_store_dwordx4 {vr(P, 4)}, v{ooff}, {sr(S_['srdO'], 4)}, 0 offen")
    k(f"buffer_store_dwordx4 {vr(P + 4, 4)}, v{ooff}, {sr(S_['srdO'], 4)}, 0 offen offset:32")
    k(f"v_add_u32 v{ooff}, {32 * 2048}, v{ooff}")
    k(f"s_sub_u32 s{S_['cnt']}, s{S_['cnt']}, 1")
    k(f"s_cmp_lg_u32 s{S_['cnt']}, 0")
    k(f"s_cbranch_scc1 {Lloop}")
    k.label(Lx)
    k("s_endpgm")


def qside2_role(k, s_head, s_part):
    S_ = SG
    load_ptr(k, S_['ws'], "ws")
    load_ptr(k, 6, "w_phi")
    k("v_lshrrev_b32 v1, 6, v0")
    k(f"v_readfirstlane_b32 s{S_['w']}, v1")
    k("s_waitcnt lgkmcnt(0)")
    srd(k, S_['srdA'], S_['ws'], S * D * 2, WS_QKV)
    srd(k, S_['srdB'], 6, 32 * 32 * 32 * 2)
    srd(k, S_['srdO'], S_['ws'], S * D * 2, WS_O)
    srd(k, S_['srdX'], S_['ws'], 32 * NPART * KVP_BYTES, WS_KV)
    lane = 2
    k(f"v_and_b32 v{lane}, 63, v0")
    k("v_lshlrev_b32 v3, 4, v2")
    KVL = 4096
    Lnw = k.newlabel("nw")
    k(f"s_cmp_lg_u32 s{S_['w']}, 11")
    k(f"s_cbranch_scc1 {Lnw}")
    k(f"s_lshl_b32 s{S_['t0']}, s{s_head}, 11")
    k("s_mov_b32 m0, 0")
    k(f"buffer_load_dwordx4 v3, {sr(S_['srdB'], 4)}, s{S_['t0']} offen lds")
    k(f"s_add_u32 s{S_['t0']}, s{S_['t0']}, 1024")
    k("s_mov_b32 m0, 1024")
    k(f"buffer_load_dwordx4 v3, {sr(S_['srdB'], 4)}, s{S_['t0']} offen lds")
    k("s_waitcnt vmcnt(0)")
    k.label(Lnw)
    Lns = k.newlabel("ns")
    k("v_cmp_gt_u32 vcc, 528, v0")
    k("s_and_saveexec_b64 s[56:57], vcc")
    k(f"s_cbranch_execz {Lns}")
    k("v_lshlrev_b32 v4, 4, v0")
    k(f"s_mul_i32 s{S_['t0']}, s{s_head}, {NPART * KVP_BYTES}")
    for p in range(NPART):
        k(f"buffer_load_dwordx4 {vr(16 + 4 * p, 4)}, v4, {sr(S_['srdX'], 4)}, s{S_['t0']} offen")
        if p != NPART - 1:
            k(f"s_add_u32 s{S_['t0']}, s{S_['t0']}, {KVP_BYTES}")
    k("s_waitcnt vmcnt(0)")
    for st_ in (16, 8, 4):
        for i in range(st_):
            k(f"v_add_f32 v{16 + i}, v{16 + i}, v{16 + st_ + i}")
    k(f"ds_write_b128 v4, v[16:19] offset:{KVL}")
    k.label(Lns)
    k("s_mov_b64 exec, s[56:57]")
    l31, h = 7, 8
    k(f"v_and_b32 v{l31}, 31, v{lane}")
    k(f"v_lshrrev_b32 v{h}, 5, v{lane}")
    k(f"s_mul_i32 s{S_['t2']}, s{s_part}, 22")
    k(f"s_add_u32 s{S_['t3']}, s{S_['t2']}, 22")
    k(f"s_min_u32 s{S_['t3']}, s{S_['t3']}, 64")
    k(f"s_add_u32 s{S_['t2']}, s{S_['t2']}, s{S_['w']}")
    koff, ooff = 9, 10
    k(f"s_lshl_b32 s{S_['t0']}, s{S_['t2']}, 5")
    k(f"v_add_u32 v{koff}, s{S_['t0']}, v{l31}")
    k(f"v_lshlrev_b32 v{koff}, 11, v{koff}")
    k(f"v_lshl_add_u32 v{koff}, v{h}, 4, v{koff}")
    k(f"s_lshl_b32 s{S_['t0']}, s{s_head}, 6")
    k(f"v_add_u32 v{koff}, s{S_['t0']}, v{koff}")
    KF = 72
    k(f"buffer_load_dwordx4 {vr(KF, 4)}, v{koff}, {sr(S_['srdA'], 4)}, 0 offen")
    k(f"buffer_load_dwordx4 {vr(KF + 4, 4)}, v{koff}, {sr(S_['srdA'], 4)}, 0 offen offset:32")
    k("s_waitcnt lgkmcnt(0)")
    k("s_barrier")
    a_w = 4
    tr_addr_small(k, lane, a_w, 11, 64)
    for kk in range(2):
        for j in range(2):
            k(f"ds_read_b64_tr_b16 {vr(16 + kk * 4 + j * 2, 2)}, v{a_w} offset:{(kk * 16 + j * 4) * 64}")
    KVF, ZF, LA = 24, 40, 112
    x = 11
    k(f"v_lshlrev_b32 v{x}, 10, v{h}")
    k(f"v_lshl_add_u32 v{x}, v{l31}, 5, v{x}")
    for jj in range(4):
        for j in range(2):
            k(f"ds_read_b128 {vr(LA + jj * 8 + j * 4, 4)}, v{x} offset:{KVL + jj * 2048 + j * 16}")
    k(f"v_lshlrev_b32 v{x}, 5, v{h}")
    for jj in range(4):
        for j in range(2):
            k(f"ds_read_b128 {vr(ZF + jj * 8 + j * 4, 4)}, v{x} offset:{KVL + 8192 + jj * 64 + j * 16}")
    k("s_waitcnt lgkmcnt(0)")
    for i in range(16):
        k(f"v_cvt_pk_bf16_f32 v{KVF + i}, v{LA + 2 * i}, v{LA + 2 * i + 1}")
    for i in range(0, 32, 2):
        bf16r2(k, ZF + i, ZF + i + 1, LA)
    k(f"s_mov_b32 s58, {f32hex(LOG2E)}")
    k(f"s_mov_b32 s59, {f32hex(LOG2E)}")
    T, PN, R, TMP, NUM = 80, 96, 112, 144, 152
    Lloop = k.newlabel("qsl"); Lx = k.newlabel("qsx")
    k.label(Lloop)
    k(f"s_cmp_ge_u32 s{S_['t2']}, s{S_['t3']}")
    k(f"s_cbranch_scc1 {Lx}")
    k("s_waitcnt vmcnt(0)")
    k(f"v_mfma_f32_32x32x16_bf16 {vr(T, 16)}, {vr(16, 4)}, {vr(KF, 4)}, 0")
    k(f"v_mfma_f32_32x32x16_bf16 {vr(T, 16)}, {vr(20, 4)}, {vr(KF + 4, 4)}, {vr(T, 16)}")
    k(f"v_add_u32 v{ooff}, {12 * 32 * 2048}, v{koff}")
    k(f"buffer_load_dwordx4 {vr(KF, 4)}, v{ooff}, {sr(S_['srdA'], 4)}, 0 offen")
    k(f"buffer_load_dwordx4 {vr(KF + 4, 4)}, v{ooff}, {sr(S_['srdA'], 4)}, 0 offen offset:32")
    for i in range(0, 16, 2):
        bf16r2(k, T + i, T + i + 1, TMP)
    phi_softmax2(k, T, PN, PN + 8, R, TMP)
    k(f"v_mfma_f32_32x32x16_bf16 {vr(NUM, 16)}, {vr(KVF, 4)}, {vr(PN, 4)}, 0")
    for jj in range(1, 4):
        k(f"v_mfma_f32_32x32x16_bf16 {vr(NUM, 16)}, {vr(KVF + 4 * jj, 4)}, {vr(PN + 4 * jj, 4)}, {vr(NUM, 16)}")
    den = TMP
    k(f"v_mov_b32 v{den}, 0")
    for i in range(16):
        k(f"v_lshlrev_b32 v{TMP + 1}, 16, v{PN + i}")
        k(f"v_fmac_f32 v{den}, v{TMP + 1}, v{ZF + 2 * i}")
        k(f"v_and_b32 v{TMP + 1}, 0xffff0000, v{PN + i}")
        k(f"v_fmac_f32 v{den}, v{TMP + 1}, v{ZF + 2 * i + 1}")
    half_reduce32(k, den, TMP + 1, "add")
    bf16r1(k, den, TMP + 1)
    k(f"v_add_f32 v{den}, {f32hex(1e-6)}, v{den}")
    bf16r1(k, den, TMP + 1)
    k(f"v_rcp_f32 v{den}, v{den}")
    for i in range(0, 16, 2):
        bf16r2(k, NUM + i, NUM + i + 1, TMP + 1)
    for i in range(16):
        k(f"v_mul_f32 v{NUM + i}, v{NUM + i}, v{den}")
    P = R
    for q in range(4):
        k(f"v_cvt_pk_bf16_f32 v{P + 2 * q}, v{NUM + 4 * q}, v{NUM + 4 * q + 1}")
        k(f"v_cvt_pk_bf16_f32 v{P + 2 * q + 1}, v{NUM + 4 * q + 2}, v{NUM + 4 * q + 3}")
    for q in (0, 2):
        k(f"v_permlane32_swap_b32 v{P + 2 * q}, v{P + 2 * q + 2}")
        k(f"v_permlane32_swap_b32 v{P + 2 * q + 1}, v{P + 2 * q + 3}")
    k(f"buffer_store_dwordx4 {vr(P, 4)}, v{koff}, {sr(S_['srdO'], 4)}, 0 offen")
    k(f"buffer_store_dwordx4 {vr(P + 4, 4)}, v{koff}, {sr(S_['srdO'], 4)}, 0 offen offset:32")
    k(f"v_mov_b32 v{koff}, v{ooff}")
    k(f"s_add_u32 s{S_['t2']}, s{S_['t2']}, 12")
    k(f"s_branch {Lloop}")
    k.label(Lx)
    k("s_endpgm")


def gen_l2():
    cfg = GemmCfg(2, 2, 2, 2, 3)
    k = Kernel("l2_kernel")
    S_ = SG
    g = GemmGen(k, cfg, S_, fsets=2)
    Lend = k.newlabel("end"); Lcs = k.newlabel("cs"); Lqs = k.newlabel("qs")
    k(f"s_cmp_ge_u32 s2, {128 + 96 + 28}")
    k(f"s_cbranch_scc1 {Lend}")
    xcd_decode(k)
    k(f"s_cmp_ge_u32 s{S_['jj']}, 28")
    k(f"s_cbranch_scc1 {Lcs}")
    k(f"s_cmp_ge_u32 s{S_['jj']}, 16")
    k(f"s_cbranch_scc1 {Lqs}")
    w2_role(k, g, cfg, 0)
    k.label(Lqs)
    k(f"s_sub_u32 s{S_['id']}, s2, 128")
    k(f"s_lshr_b32 s{S_['t5']}, s{S_['id']}, 5")
    k(f"s_and_b32 s{S_['id']}, s{S_['id']}, 31")
    qside2_role(k, S_['id'], S_['t5'])
    k.label(Lcs)
    cs3_role(k, 28)
    k.label(Lend)
    k("s_endpgm")
    return k, 168, 128 + 96 + 28, 147456, 768


def gen_l3():
    cfg = GemmCfg()
    k = Kernel("l3_kernel")
    g = GemmGen(k, cfg, SG)
    n3 = (S // cfg.BM) * (3584 // cfg.BN)
    Lend = k.newlabel("end")
    k(f"s_cmp_ge_u32 s2, {n3}")
    k(f"s_cbranch_scc1 {Lend}")
    w3_role(k, g, cfg, 0)
    k.label(Lend)
    k("s_endpgm")
    return k, 168, n3, cfg.lds, cfg.nthreads


def gen_l4():
    cfg = GemmCfg(*[int(x) for x in os.environ.get('CFG4', '4,1,1,2,6').split(',')])
    k = Kernel("l4_kernel")
    S_ = SG
    g = GemmGen(k, cfg, S_, fsets=2)
    n4 = (S // cfg.BM) * (1024 // cfg.BN)
    Lend = k.newlabel("end")
    k(f"s_cmp_ge_u32 s2, {n4}")
    k(f"s_cbranch_scc1 {Lend}")
    xcd_decode(k)
    xcd_tile(k, 1, (S // cfg.BM) // 4, (1024 // cfg.BN) // 2)
    load_ptr(k, S_['ws'], "ws")
    load_ptr(k, 4, "wo")
    load_ptr(k, 6, "w4")
    load_ptr(k, 58, "out")
    k("s_waitcnt lgkmcnt(0)")
    srd(k, S_['srdA'], S_['ws'], S * D * 2, WS_O)
    srd(k, S_['srdB'], 4, D * D * 2)
    srd(k, S_['srdO'], 58, S * D * 2)
    k(f"s_mov_b32 s{S_['koffA']}, 0")
    k(f"s_mov_b32 s{S_['koffB']}, 0")
    k(f"s_mov_b32 s{S_['cnt']}, {D // 64}")
    g.prologue_common()
    g.loader_begin()
    g.loader_segment(2048, 2048, S_['tm'], S_['tn'], std_adv(2048))
    k("s_barrier")
    srd(k, S_['srdA'], S_['ws'], S * 3584 * 2, WS_H3)
    srd(k, S_['srdB'], 6, 3584 * D * 2)
    k(f"s_mov_b32 s{S_['koffA']}, 0")
    k(f"s_mov_b32 s{S_['koffB']}, 0")
    k(f"s_mov_b32 s{S_['cnt']}, {3584 // 64}")
    g.loader_segment(7168, 2048, S_['tm'], S_['tn'], std_adv(2048))
    g.loader_end()
    g.prologue_addr(2048, 2048, S_['tm'], S_['tn'])
    g.zero_acc()
    g.mainloop()
    k("s_barrier")
    nacc = cfg.MB * cfg.NB * 16
    AP = g.tmp
    for i in range(nacc // 2):
        k(f"v_cvt_pk_bf16_f32 v{AP + i}, v{g.acc + 2 * i}, v{g.acc + 2 * i + 1}")
    g.zero_acc()
    k(f"s_mov_b32 s{S_['cnt']}, {3584 // 64}")
    g.mainloop()
    srd(k, S_['srdX'], S_['ws'], S * D * 2, WS_X1)
    srd(k, S_['srdY'], S_['ws'], S * 4, WS_G)
    st = {}

    def pre(g, ctx):
        f = AP + nacc // 2
        st['xoff'] = f; st['xr'] = f + 2; st['g'] = f + 10; st['t'] = f + 12; st['og'] = f + 14
        k(f"v_add_u32 v{f}, s{ctx['row0']}, v{ctx['l31']}")
        k(f"v_lshlrev_b32 v{f + 1}, 2, v{f}")
        k(f"v_lshlrev_b32 v{f}, 11, v{f}")
        k(f"v_lshl_add_u32 v{f}, v{ctx['h']}, 3, v{f}")
        k(f"s_lshl_b32 s{S_['t0']}, s{ctx['col0']}, 1")
        k(f"v_add_u32 v{f}, s{S_['t0']}, v{f}")
        k(f"s_mov_b32 s{S_['t1']}, {32 * 2048}")
        for rb in range(cfg.MB):
            k(f"buffer_load_dword v{st['g'] + rb}, v{f + 1}, {sr(S_['srdY'], 4)}, 0 offen offset:{rb * 128}")

    def hook(g, ctx, cb, rb, a):
        xr, t = st['xr'], st['t']
        soff = "0" if rb == 0 else f"s{S_['t1']}"
        for q in range(4):
            k(f"buffer_load_dwordx2 {vr(xr + 2 * q, 2)}, v{st['xoff']}, {sr(S_['srdX'], 4)}, {soff} offen offset:{cb * 64 + q * 16}")
        for i in range(0, 16, 2):
            bf16r2(k, a + i, a + i + 1, t)
        k("s_waitcnt vmcnt(0)")
        gq = st['g'] + rb
        og = st['og']
        k(f"v_sub_f32 v{og}, 1.0, v{gq}")
        bf16r1(k, og, t)
        for q in range(4):
            for j in range(2):
                i = a + 4 * q + 2 * j
                k(f"v_lshlrev_b32 v{t}, 16, v{xr + 2 * q + j}")
                k(f"v_add_f32 v{i}, v{i}, v{t}")
                k(f"v_and_b32 v{t}, 0xffff0000, v{xr + 2 * q + j}")
                k(f"v_add_f32 v{i + 1}, v{i + 1}, v{t}")
        for i in range(0, 16, 2):
            bf16r2(k, a + i, a + i + 1, t)
        for i in range(16):
            k(f"v_mul_f32 v{a + i}, v{a + i}, v{og}")
        for i in range(0, 16, 2):
            bf16r2(k, a + i, a + i + 1, t)
        ap = AP + (a - g.acc) // 2
        for i in range(8):
            k(f"v_lshlrev_b32 v{t}, 16, v{ap + i}")
            k(f"v_mul_f32 v{t}, v{t}, v{gq}")
            k(f"v_and_b32 v{t + 1}, 0xffff0000, v{ap + i}")
            k(f"v_mul_f32 v{t + 1}, v{t + 1}, v{gq}")
            bf16r2(k, t, t + 1, og + 1)
            k(f"v_add_f32 v{a + 2 * i}, v{a + 2 * i}, v{t}")
            k(f"v_add_f32 v{a + 2 * i + 1}, v{a + 2 * i + 1}, v{t + 1}")
    epilogue_lds(g, 2048, hook=hook, pre=pre, ebase=g.fx[0])
    k.label(Lend)
    k("s_endpgm")
    return k, 168, n4, cfg.lds, 768


def prefetch_seg(k, cfg, lda, ldb, nsteps, depth, first, adv_b=None):
    S_ = SG
    k(f"s_sub_u32 s{S_['t2']}, s{S_['w']}, {cfg.nw + cfg.NL}")
    k("v_and_b32 v4, 63, v0")
    La = k.newlabel("pfa"); Lgo = k.newlabel("pfg")
    k(f"s_cmp_lg_u32 s{S_['t2']}, 0")
    k(f"s_cbranch_scc1 {La}")
    k(f"s_mul_i32 s{S_['t0']}, s{S_['tm']}, {cfg.BM}")
    k(f"v_add_u32 v5, s{S_['t0']}, v4")
    k(f"s_mov_b32 s{S_['t1']}, {lda}")
    k(f"v_mul_lo_u32 v5, v5, s{S_['t1']}")
    k(f"v_add_u32 v6, {64 * lda}, v5")
    k(f"s_mov_b32 s{S_['t3']}, 128")
    k(f"s_mov_b32 s{S_['m0a']}, s{S_['koffA']}")
    k(f"s_branch {Lgo}")
    k.label(La)
    k(f"s_mov_b32 s{S_['t1']}, {ldb}")
    k(f"v_mul_lo_u32 v5, v4, s{S_['t1']}")
    k(f"s_mul_i32 s{S_['t0']}, s{S_['tn']}, {cfg.BN * 2}")
    k(f"v_add_u32 v5, s{S_['t0']}, v5")
    k(f"v_add_u32 v6, 128, v5")
    k(f"s_mov_b32 s{S_['t3']}, {64 * ldb}")
    k(f"s_mov_b32 s{S_['m0a']}, s{S_['koffB']}")
    for i in range(4):
        k(f"s_mov_b32 s{S_['srdA'] + i}, s{S_['srdB'] + i}")
    k.label(Lgo)
    k(f"s_mul_i32 s{S_['t0']}, s{S_['t3']}, {depth}")
    k(f"s_add_u32 s{S_['m0a']}, s{S_['m0a']}, s{S_['t0']}")
    k(f"s_mov_b32 s{S_['cnt']}, {nsteps}")
    Ll = k.newlabel("pfl")
    k.label(Ll)
    k("s_barrier")
    k(f"buffer_load_dword v7, v5, {sr(S_['srdA'], 4)}, s{S_['m0a']} offen")
    k(f"buffer_load_dword v8, v6, {sr(S_['srdA'], 4)}, s{S_['m0a']} offen")
    k("s_waitcnt vmcnt(24)")
    k(f"s_add_u32 s{S_['m0a']}, s{S_['m0a']}, s{S_['t3']}")
    k(f"s_sub_u32 s{S_['cnt']}, s{S_['cnt']}, 1")
    k(f"s_cmp_lg_u32 s{S_['cnt']}, 0")
    k(f"s_cbranch_scc1 {Ll}")


def gen_l4b():
    cfg = GemmCfg(*[int(x) for x in os.environ.get('CFG4B', '4,2,1,2,4').split(',')])
    k = Kernel("l4_kernel")
    S_ = SG
    g = GemmGen(k, cfg, S_, fsets=2)
    N0 = 20
    PFD = int(os.environ.get('PF', '0'))
    Lend = k.newlabel("end")
    k("s_cmp_ge_u32 s2, 256")
    k(f"s_cbranch_scc1 {Lend}")
    xcd_decode(k)
    HF = S_['t6']
    k(f"s_lshr_b32 s{HF}, s{S_['jj']}, 4")
    k(f"s_and_b32 s{S_['t0']}, s{S_['jj']}, 15")
    k(f"s_lshr_b32 s{S_['tm']}, s{S_['xx']}, 1")
    k(f"s_lshl_b32 s{S_['tm']}, s{S_['tm']}, 2")
    k(f"s_lshr_b32 s{S_['t1']}, s{S_['t0']}, 2")
    k(f"s_add_u32 s{S_['tm']}, s{S_['tm']}, s{S_['t1']}")
    k(f"s_and_b32 s{S_['tn']}, s{S_['xx']}, 1")
    k(f"s_lshl_b32 s{S_['tn']}, s{S_['tn']}, 2")
    k(f"s_and_b32 s{S_['t1']}, s{S_['t0']}, 3")
    k(f"s_add_u32 s{S_['tn']}, s{S_['tn']}, s{S_['t1']}")
    TILE = 62
    k(f"s_lshl_b32 s{TILE}, s{S_['tm']}, 3")
    k(f"s_add_u32 s{TILE}, s{TILE}, s{S_['tn']}")
    load_ptr(k, S_['ws'], "ws")
    load_ptr(k, 4, "wo")
    load_ptr(k, 6, "w4")
    load_ptr(k, 58, "out")
    k("s_waitcnt lgkmcnt(0)")
    srd(k, S_['srdO'], 58, S * D * 2)
    g.prologue_common()
    Lh1 = k.newlabel("h1")
    k(f"s_cmp_lg_u32 s{HF}, 0")
    k(f"s_cbranch_scc1 {Lh1}")
    srd(k, S_['srdA'], S_['ws'], S * D * 2, WS_O)
    srd(k, S_['srdB'], 4, D * D * 2)
    k(f"s_mov_b32 s{S_['koffA']}, 0")
    k(f"s_mov_b32 s{S_['koffB']}, 0")
    k(f"s_mov_b32 s{S_['cnt']}, {D // 64}")

    def pf0():
        prefetch_seg(k, cfg, 2048, 2048, D // 64, PFD, True)
        k("s_barrier")
        srd(k, S_['srdA'], S_['ws'], S * 3584 * 2, WS_H3)
        srd(k, S_['srdB'], 6, 3584 * D * 2)
        k(f"s_mov_b32 s{S_['koffA']}, 0")
        k(f"s_mov_b32 s{S_['koffB']}, 0")
        prefetch_seg(k, cfg, 7168, 2048, N0, PFD, True)
    g.loader_begin(extra=pf0 if PFD else None)
    g.loader_segment(2048, 2048, S_['tm'], S_['tn'], std_adv(2048))
    k("s_barrier")
    srd(k, S_['srdA'], S_['ws'], S * 3584 * 2, WS_H3)
    srd(k, S_['srdB'], 6, 3584 * D * 2)
    k(f"s_mov_b32 s{S_['koffA']}, 0")
    k(f"s_mov_b32 s{S_['koffB']}, 0")
    k(f"s_mov_b32 s{S_['cnt']}, {N0}")
    g.loader_segment(7168, 2048, S_['tm'], S_['tn'], std_adv(2048))
    g.loader_end()
    g.prologue_addr(2048, 2048, S_['tm'], S_['tn'])
    g.zero_acc()
    g.mainloop()
    k("s_barrier")
    nacc = cfg.MB * cfg.NB * 16
    AP = g.tmp
    for i in range(nacc // 2):
        k(f"v_cvt_pk_bf16_f32 v{AP + i}, v{g.acc + 2 * i}, v{g.acc + 2 * i + 1}")
    g.zero_acc()
    k(f"s_mov_b32 s{S_['cnt']}, {N0}")
    g.mainloop()
    Ljoin = k.newlabel("join")
    k(f"s_branch {Ljoin}")
    k.label(Lh1)
    srd(k, S_['srdA'], S_['ws'], S * 3584 * 2, WS_H3)
    srd(k, S_['srdB'], 6, 3584 * D * 2)
    k(f"s_mov_b32 s{S_['koffA']}, {N0 * 128}")
    k(f"s_mov_b32 s{S_['koffB']}, {N0 * 64 * 2048}")
    k(f"s_mov_b32 s{S_['cnt']}, {56 - N0}")
    g.loader_begin(extra=(lambda: prefetch_seg(k, cfg, 7168, 2048, 56 - N0, PFD, True)) if PFD else None)
    g.loader_segment(7168, 2048, S_['tm'], S_['tn'], std_adv(2048))
    g.loader_end()
    g.prologue_addr(2048, 2048, S_['tm'], S_['tn'])
    g.zero_acc()
    g.mainloop()
    for i in range(nacc // 2):
        k(f"v_mov_b32 v{AP + i}, 0")
    k.label(Ljoin)
    srd(k, S_['srdX'], S_['ws'], S * D * 2, WS_X1)
    srd(k, S_['srdY'], S_['ws'], S * 4, WS_G)
    srd(k, S_['srdZ'], S_['ws'], 16384 + (WS_PART - WS_FLAG) + 128 * 65536, WS_FLAG)
    f = AP + 32
    gq, og, t = f, f + 2, f + 4
    k(f"v_and_b32 v{t}, 31, v{g.vtid}")
    k(f"s_mul_i32 s{S_['t0']}, s{S_['tm']}, {cfg.BM}")
    k(f"s_mul_i32 s{S_['t1']}, s{S_['wm']}, {cfg.MB * 32}")
    k(f"s_add_u32 s{S_['t0']}, s{S_['t0']}, s{S_['t1']}")
    k(f"v_add_u32 v{t}, s{S_['t0']}, v{t}")
    k(f"v_lshlrev_b32 v{t}, 2, v{t}")
    for rb in range(cfg.MB):
        k(f"buffer_load_dword v{gq + rb}, v{t}, {sr(S_['srdY'], 4)}, 0 offen offset:{rb * 128}")
    Lna = k.newlabel("na")
    k(f"s_cmp_lg_u32 s{S_['w']}, 0")
    k(f"s_cbranch_scc1 {Lna}")
    k(f"v_mov_b32 v{t + 1}, 1")
    k(f"v_mov_b32 v{t + 2}, 0")
    k(f"s_lshl_b32 s{S_['t0']}, s{TILE}, 6")
    k("s_mov_b64 s[56:57], exec")
    k("s_mov_b64 exec, 1")
    k(f"buffer_atomic_add v{t + 1}, v{t + 2}, {sr(S_['srdZ'], 4)}, s{S_['t0']} offen sc0 sc1")
    k("s_waitcnt vmcnt(0)")
    k(f"v_mov_b32 v{t + 2}, {cfg.lds}")
    k(f"ds_write_b32 v{t + 2}, v{t + 1} offset:0")
    k("s_mov_b64 exec, s[56:57]")
    k.label(Lna)
    k("s_waitcnt vmcnt(0)")
    for rb in range(cfg.MB):
        k(f"v_sub_f32 v{og + rb}, 1.0, v{gq + rb}")
        bf16r1(k, og + rb, t + 3)
    for cb in range(cfg.NB):
        for rb in range(cfg.MB):
            a = g.accr(cb, rb)
            ap = AP + (a - g.acc) // 2
            for i in range(8):
                k(f"v_lshlrev_b32 v{t}, 16, v{ap + i}")
                k(f"v_and_b32 v{t + 1}, 0xffff0000, v{ap + i}")
                k(f"v_mul_f32 v{a + 2 * i}, v{a + 2 * i}, v{og + rb}")
                k(f"v_mul_f32 v{a + 2 * i + 1}, v{a + 2 * i + 1}, v{og + rb}")
                k(f"v_fmac_f32 v{a + 2 * i}, v{t}, v{gq + rb}")
                k(f"v_fmac_f32 v{a + 2 * i + 1}, v{t + 1}, v{gq + rb}")
    k("s_waitcnt lgkmcnt(0)")
    k("s_barrier")
    k(f"v_mov_b32 v{t}, {cfg.lds}")
    k(f"ds_read_b32 v{t + 1}, v{t} offset:0")
    k("s_waitcnt lgkmcnt(0)")
    k(f"v_readfirstlane_b32 s{S_['t2']}, v{t + 1}")
    Lfin = k.newlabel("fin")
    if 'noex' in os.environ.get('EXP4', ''):
        k(f"s_branch {Lfin}")
    pa = t + 2
    k(f"v_and_b32 v{pa}, 63, v{g.vtid}")
    k(f"v_lshlrev_b32 v{pa}, 4, v{pa}")
    k(f"s_lshl_b32 s{S_['t0']}, s{TILE}, 16")
    k(f"s_mul_i32 s{S_['t1']}, s{S_['w']}, {nacc * 256}")
    k(f"s_add_u32 s{S_['t0']}, s{S_['t0']}, s{S_['t1']}")
    k(f"s_add_u32 s{S_['t0']}, s{S_['t0']}, {WS_PART - WS_FLAG}")
    Lsec = k.newlabel("sec")
    k(f"s_cmp_lg_u32 s{S_['t2']}, 0")
    k(f"s_cbranch_scc1 {Lsec}")
    for j in range(nacc // 4):
        if j % 4 == 0 and j:
            k(f"s_add_u32 s{S_['t0']}, s{S_['t0']}, 4096")
        k(f"buffer_store_dwordx4 {vr(g.acc + 4 * j, 4)}, v{pa}, {sr(S_['srdZ'], 4)}, s{S_['t0']} offen offset:{(j % 4) * 1024} sc0 sc1")
    k("s_waitcnt vmcnt(0)")
    k("s_barrier")
    k(f"s_cmp_lg_u32 s{S_['w']}, 0")
    k(f"s_cbranch_scc1 {Lend}")
    k(f"v_mov_b32 v{t + 1}, 1")
    k(f"v_mov_b32 v{t}, 0")
    k(f"s_lshl_b32 s{S_['t0']}, s{TILE}, 6")
    k(f"s_add_u32 s{S_['t0']}, s{S_['t0']}, 8192")
    k("s_mov_b64 exec, 1")
    k(f"buffer_atomic_add v{t + 1}, v{t}, {sr(S_['srdZ'], 4)}, s{S_['t0']} offen sc1")
    k("s_endpgm")
    k.label(Lsec)
    k(f"s_lshl_b32 s{S_['t1']}, s{TILE}, 6")
    k(f"s_add_u32 s{S_['t1']}, s{S_['t1']}, 8192")
    k(f"v_mov_b32 v{t}, 0")
    Lspin = k.newlabel("spin"); Lgo = k.newlabel("go")
    k.label(Lspin)
    k(f"buffer_load_dword v{t + 1}, v{t}, {sr(S_['srdZ'], 4)}, s{S_['t1']} offen sc0 sc1")
    k("s_waitcnt vmcnt(0)")
    k(f"v_readfirstlane_b32 s{S_['t2']}, v{t + 1}")
    k(f"s_cmp_lg_u32 s{S_['t2']}, 0")
    k(f"s_cbranch_scc1 {Lgo}")
    k("s_sleep 4")
    k(f"s_branch {Lspin}")
    k.label(Lgo)
    PB = g.fx[0] if False else None
    for b in range(nacc // 32):
        for j in range(8):
            jj = b * 8 + j
            if jj % 4 == 0 and jj:
                k(f"s_add_u32 s{S_['t0']}, s{S_['t0']}, 4096")
            k(f"buffer_load_dwordx4 {vr(AP + 4 * j, 4)}, v{pa}, {sr(S_['srdZ'], 4)}, s{S_['t0']} offen offset:{(jj % 4) * 1024} sc0 sc1")
        for j in range(8):
            k(f"s_waitcnt vmcnt({7 - j})")
            for i in range(4):
                r = g.acc + 32 * b + 4 * j + i
                k(f"v_add_f32 v{r}, v{r}, v{AP + 4 * j + i}")
    k.label(Lfin)
    st = {}

    def pre(g, ctx):
        ff = AP
        st['xoff'] = ff; st['xr'] = ff + 2; st['t'] = ff + 10
        k(f"v_add_u32 v{ff}, s{ctx['row0']}, v{ctx['l31']}")
        k(f"v_lshlrev_b32 v{ff}, 11, v{ff}")
        k(f"v_lshl_add_u32 v{ff}, v{ctx['h']}, 3, v{ff}")
        k(f"s_lshl_b32 s{S_['t0']}, s{ctx['col0']}, 1")
        k(f"v_add_u32 v{ff}, s{S_['t0']}, v{ff}")
        k(f"s_mov_b32 s{S_['t1']}, {32 * 2048}")

    def hook(g, ctx, cb, rb, a):
        xr, tt = st['xr'], st['t']
        soff = "0" if rb == 0 else f"s{S_['t1']}"
        for q in range(4):
            k(f"buffer_load_dwordx2 {vr(xr + 2 * q, 2)}, v{st['xoff']}, {sr(S_['srdX'], 4)}, {soff} offen offset:{cb * 64 + q * 16}")
        k("s_waitcnt vmcnt(0)")
        for q in range(4):
            for j in range(2):
                i = a + 4 * q + 2 * j
                k(f"v_lshlrev_b32 v{tt}, 16, v{xr + 2 * q + j}")
                k(f"v_fmac_f32 v{i}, v{tt}, v{og + rb}")
                k(f"v_and_b32 v{tt}, 0xffff0000, v{xr + 2 * q + j}")
                k(f"v_fmac_f32 v{i + 1}, v{tt}, v{og + rb}")
    epilogue_lds(g, 2048, hook=hook, pre=pre, ebase=g.fx[0])
    k.label(Lend)
    k("s_endpgm")
    assert f + 8 <= 168, f
    return k, (128 if PFD else 168), 256, 147456, (896 if PFD else 768)


def all_kernels():
    l4 = gen_l4b() if os.environ.get("L4B", "1") == "1" else gen_l4()
    ks = [gen.gen_l0(), gen_l1(), gen_l2(), gen_l3(), l4]
    n = int(os.environ.get("NLAUNCH", "9"))
    return ks[:n]
```

```python
import sys, os
sys.path.insert(0, os.path.dirname(os.path.abspath(__file__)))
from asmdsl import Kernel
from gemm import GemmCfg, GemmGen, vr, sr
from common import *

NAME = "gated_mix__linear_kernel_hedgehog__mixer_s_mlp__prompt"

HEADER = """; Kernarg layout for this problem (104 bytes, ptrs only, base s[0:1]):
"""
KA = dict(A_x=0, wqkv=8, w_phi=16, wo=24, B_x=32, w1=40, w2=48, w3=56, w4=64, gate_w=72, out=80, dbg=88, ws=96)

SG = dict(srdA=8, srdB=12, srdO=16, srdX=20, w=24, wm=25, wn=26, m0a=27, m0b=28, t0=29, t1=30,
          koffA=31, koffB=32, cnt=33, tm=34, tn=35, t2=36, t3=37, gc1=38, gc2=39, ws=40, srdY=44, srdZ=48,
          id=52, t4=53, t5=54, t6=55, xx=70, jj=71)


def kernel_text(k, vgprs, sgprs=102):
    body = k.finish()
    out = [".text", f".globl {k.name}", ".p2align 8", f".type {k.name},@function", f"{k.name}:"]
    out += ["    " + l if not l.endswith(":") else l for l in body]
    vg = (vgprs + 7) // 8 * 8
    assert vg <= 256, vg
    desc = f""".section .rodata,"a"
.p2align 6
.amdhsa_kernel {k.name}
  .amdhsa_next_free_vgpr {vg}
  .amdhsa_next_free_sgpr {sgprs}
  .amdhsa_accum_offset {vg}
  .amdhsa_group_segment_fixed_size 0
  .amdhsa_kernarg_size 104
  .amdhsa_user_sgpr_count 2
  .amdhsa_user_sgpr_kernarg_segment_ptr 1
  .amdhsa_system_sgpr_workgroup_id_x 1
.end_amdhsa_kernel"""
    return "\n".join(out), desc


def load_ptr(k, dst, name):
    k(f"s_load_dwordx2 s[{dst}:{dst + 1}], s[0:1], {KA[name]}")


def xcd_decode(k):
    k(f"s_and_b32 s{SG['xx']}, s2, 7")
    k(f"s_lshr_b32 s{SG['jj']}, s2, 3")


def xcd_tile(k, gm_shift, bm, bn, jbase=0):
    S_ = SG
    k(f"s_sub_u32 s{S_['t0']}, s{S_['jj']}, {jbase}")
    k(f"s_mul_hi_u32 s{S_['t1']}, s{S_['t0']}, {(2**32 + bn - 1) // bn}")
    k(f"s_mul_i32 s{S_['tn']}, s{S_['t1']}, {bn}")
    k(f"s_sub_u32 s{S_['tn']}, s{S_['t0']}, s{S_['tn']}")
    k(f"s_lshr_b32 s{S_['tm']}, s{S_['xx']}, {gm_shift}")
    k(f"s_mul_i32 s{S_['tm']}, s{S_['tm']}, {bm}")
    k(f"s_add_u32 s{S_['tm']}, s{S_['tm']}, s{S_['t1']}")
    k(f"s_and_b32 s{S_['t1']}, s{S_['xx']}, {(1 << gm_shift) - 1}")
    k(f"s_mul_i32 s{S_['t1']}, s{S_['t1']}, {bn}")
    k(f"s_add_u32 s{S_['tn']}, s{S_['tn']}, s{S_['t1']}")


def tile_decode(k, ntn, base):
    S_ = SG
    k(f"s_sub_u32 s{S_['id']}, s2, {base}")
    k(f"s_mul_hi_u32 s{S_['tm']}, s{S_['id']}, {(2**32 + ntn - 1) // ntn}")
    k(f"s_mul_i32 s{S_['t0']}, s{S_['tm']}, {ntn}")
    k(f"s_sub_u32 s{S_['tn']}, s{S_['id']}, s{S_['t0']}")


def epilogue_lds(g, ldo, hook=None, pre=None, post=None, ebase=None):
    k, c, S_ = g.k, g.cfg, SG
    assert c.NB == 2
    t = ebase if ebase is not None else g.fx[0]
    lane, l31, h, off, wa, ra = t, t + 1, t + 2, t + 3, t + 4, t + 5
    x, y = t + 6, t + 7
    pk = (t + 8 + 3) // 4 * 4
    z = pk + 8
    pa = z + 1
    free = (pa + 4 + 3) // 4 * 4
    rows = c.MB * 32
    k("s_barrier")
    k(f"v_and_b32 v{lane}, 63, v{g.vtid}")
    k(f"v_and_b32 v{l31}, 31, v{lane}")
    k(f"v_lshrrev_b32 v{h}, 5, v{lane}")
    k(f"s_mul_i32 s{S_['t2']}, s{S_['w']}, {rows * 128}")
    k(f"v_lshlrev_b32 v{wa}, 7, v{l31}")
    k(f"v_add_u32 v{wa}, s{S_['t2']}, v{wa}")
    k(f"v_and_b32 v{ra}, 7, v{l31}")
    k(f"v_lshrrev_b32 v{x}, 3, v{lane}")
    k(f"v_and_b32 v{y}, 7, v{lane}")
    k(f"v_lshlrev_b32 v{z}, 7, v{x}")
    k(f"v_lshl_add_u32 v{z}, v{y}, 4, v{z}")
    k(f"v_add_u32 v{z}, s{S_['t2']}, v{z}")
    k(f"s_mul_i32 s{S_['t0']}, s{S_['tm']}, {c.BM}")
    k(f"s_mul_i32 s{S_['t1']}, s{S_['wm']}, {c.MB * 32}")
    k(f"s_add_u32 s{S_['t0']}, s{S_['t0']}, s{S_['t1']}")
    k(f"s_mov_b32 s{S_['t4']}, s{S_['t0']}")
    k(f"v_add_u32 v{off}, s{S_['t0']}, v{x}")
    k(f"s_mov_b32 s{S_['t1']}, {ldo}")
    k(f"v_mul_lo_u32 v{off}, v{off}, s{S_['t1']}")
    k(f"v_xor_b32 v{y}, v{y}, v{x}")
    k(f"v_lshlrev_b32 v{y}, 4, v{y}")
    k(f"s_mul_i32 s{S_['t5']}, s{S_['tn']}, {c.BN}")
    k(f"s_mul_i32 s{S_['t1']}, s{S_['wn']}, {c.NB * 32}")
    k(f"s_add_u32 s{S_['t5']}, s{S_['t5']}, s{S_['t1']}")
    k(f"s_lshl_b32 s{S_['t0']}, s{S_['t5']}, 1")
    k(f"v_add3_u32 v{off}, v{off}, v{y}, s{S_['t0']}")
    for cb in range(c.NB):
        for qq in range(2):
            p = pa + cb * 2 + qq
            k(f"v_add_u32 v{p}, {cb * 4 + qq * 2}, v{h}")
            k(f"v_xor_b32 v{p}, v{p}, v{ra}")
            k(f"v_lshl_add_u32 v{p}, v{p}, 4, v{wa}")
    ctx = dict(lane=lane, l31=l31, h=h, free=free, row0=S_['t4'], col0=S_['t5'])
    if pre:
        pre(g, ctx)
    for rb in range(c.MB):
        for cb in range(c.NB):
            a = g.accr(cb, rb)
            if hook:
                hook(g, ctx, cb, rb, a)
            for q in range(4):
                k(f"v_cvt_pk_bf16_f32 v{pk + 2 * q}, v{a + 4 * q}, v{a + 4 * q + 1}")
                k(f"v_cvt_pk_bf16_f32 v{pk + 2 * q + 1}, v{a + 4 * q + 2}, v{a + 4 * q + 3}")
            for q in (0, 2):
                k(f"v_permlane32_swap_b32 v{pk + 2 * q}, v{pk + 2 * q + 2}")
                k(f"v_permlane32_swap_b32 v{pk + 2 * q + 1}, v{pk + 2 * q + 3}")
            k(f"ds_write_b128 v{pa + cb * 2}, {vr(pk, 4)} offset:{rb * 4096}")
            k(f"ds_write_b128 v{pa + cb * 2 + 1}, {vr(pk + 4, 4)} offset:{rb * 4096}")
    if post:
        post(g, ctx)
    k("s_waitcnt lgkmcnt(0)")
    n = rows // 8
    for j in range(n):
        k(f"ds_read_b128 {vr(g.acc + 4 * j, 4)}, v{z} offset:{j * 1024}")
    for j in range(n):
        k(f"s_waitcnt lgkmcnt({min(15, n - 1 - j)})")
        k(f"buffer_store_dwordx4 {vr(g.acc + 4 * j, 4)}, v{off}, {sr(S_['srdO'], 4)}, 0 offen")
        if j != n - 1:
            k(f"v_add_u32 v{off}, {8 * ldo}, v{off}")
    return free


def gelu_consts(k):
    k(f"s_mov_b32 s{SG['gc2']}, {f32hex(GELU_C2)}")


def gelu_block(k, a, n, t):
    for i in range(0, n, 2):
        bf16r2(k, a + i, a + i + 1, t)
    k(f"v_mov_b32 v{t + 2}, {f32hex(GELU_C1)}")
    for i in range(n):
        x = a + i
        k(f"v_mul_f32 v{t}, v{x}, v{x}")
        k(f"v_fma_f32 v{t}, v{t}, s{SG['gc2']}, v{t + 2}")
        k(f"v_mul_f32 v{t}, v{t}, v{x}")
        k(f"v_exp_f32 v{t}, v{t}")
        k(f"v_add_f32 v{t}, 1.0, v{t}")
        k(f"v_rcp_f32 v{t}, v{t}")
        k(f"v_mul_f32 v{x}, v{x}, v{t}")


def std_adv(ldb):
    def adv(k):
        k(f"s_add_u32 s{SG['koffA']}, s{SG['koffA']}, 128")
        k(f"s_add_u32 s{SG['koffB']}, s{SG['koffB']}, {64 * ldb}")
    return adv


def gen_l0():
    k = Kernel("l0_kernel")
    S_ = SG
    Lend = k.newlabel("end"); Lgate = k.newlabel("gate"); Lng = k.newlabel("ng")
    k("s_cmp_ge_u32 s2, 512")
    k(f"s_cbranch_scc1 {Lend}")
    load_ptr(k, S_['ws'], "ws")
    k("v_and_b32 v1, 63, v0")
    k("v_lshrrev_b32 v2, 6, v0")
    k(f"v_readfirstlane_b32 s{S_['w']}, v2")
    k("v_lshlrev_b32 v3, 4, v1")
    k("s_cmp_ge_u32 s2, 256")
    k(f"s_cbranch_scc1 {Lgate}")
    load_ptr(k, 4, "A_x")
    k("s_waitcnt lgkmcnt(0)")
    srd(k, S_['srdA'], 4, S * D * 2)
    srd(k, S_['srdO'], S_['ws'], S * D * 2, WS_XN1)
    k("s_cmp_ge_u32 s2, 4")
    k(f"s_cbranch_scc1 {Lng}")
    k(f"s_cmp_lg_u32 s{S_['w']}, 0")
    k(f"s_cbranch_scc1 {Lng}")
    srd(k, S_['srdX'], S_['ws'], 4096 + S * D * 2 + 4096, WS_HG)
    k(f"s_lshl_b32 s{S_['t0']}, s2, 11")
    k(f"s_cmp_ge_u32 s2, 2")
    k(f"s_cselect_b32 s{S_['t1']}, {S * D * 2}, 0")
    k(f"s_add_u32 s{S_['t0']}, s{S_['t0']}, s{S_['t1']}")
    for i in range(4):
        k(f"v_mov_b32 v{40 + i}, 0")
    k(f"buffer_store_dwordx4 v[40:43], v3, {sr(S_['srdX'], 4)}, s{S_['t0']} offen")
    k(f"buffer_store_dwordx4 v[40:43], v3, {sr(S_['srdX'], 4)}, s{S_['t0']} offen offset:1024")
    k.label(Lng)
    Lnf = k.newlabel("nf")
    k("s_cmp_lg_u32 s2, 4")
    k(f"s_cbranch_scc1 {Lnf}")
    srd(k, S_['srdX'], S_['ws'], 16384, WS_FLAG)
    k(f"s_lshl_b32 s{S_['t0']}, s{S_['w']}, 11")
    for i in range(4):
        k(f"v_mov_b32 v{40 + i}, 0")
    k(f"buffer_store_dwordx4 v[40:43], v3, {sr(S_['srdX'], 4)}, s{S_['t0']} offen")
    k(f"buffer_store_dwordx4 v[40:43], v3, {sr(S_['srdX'], 4)}, s{S_['t0']} offen offset:1024")
    k.label(Lnf)
    k(f"s_lshl_b32 s{S_['t0']}, s2, 3")
    k(f"s_add_u32 s{S_['t0']}, s{S_['t0']}, s{S_['w']}")
    k(f"s_lshl_b32 s{S_['t0']}, s{S_['t0']}, 11")
    k(f"buffer_load_dwordx4 v[4:7], v3, {sr(S_['srdA'], 4)}, s{S_['t0']} offen")
    k(f"buffer_load_dwordx4 v[8:11], v3, {sr(S_['srdA'], 4)}, s{S_['t0']} offen offset:1024")
    k("s_waitcnt vmcnt(0)")
    unpack8(k, 4, 16); unpack8(k, 8, 24)
    k("v_add_f32 v32, v16, v17")
    for i in range(2, 16):
        k(f"v_add_f32 v32, v32, v{16 + i}")
    allreduce(k, 32, 33)
    k(f"v_mul_f32 v32, {f32hex(1.0 / D)}, v32")
    k("v_sub_f32 v34, v16, v32")
    k("v_mul_f32 v35, v34, v34")
    for i in range(1, 16):
        k(f"v_sub_f32 v34, v{16 + i}, v32")
        k("v_fmac_f32 v35, v34, v34")
    allreduce(k, 35, 33)
    k(f"v_mul_f32 v35, {f32hex(1.0 / D)}, v35")
    bf16r2(k, 32, 35, 33)
    k(f"v_add_f32 v35, {f32hex(1e-5)}, v35")
    bf16r1(k, 35, 33)
    k("v_sqrt_f32 v35, v35")
    bf16r1(k, 35, 33)
    k("v_rcp_f32 v35, v35")
    for i in range(16):
        k(f"v_sub_f32 v{16 + i}, v{16 + i}, v32")
    for i in range(0, 16, 2):
        bf16r2(k, 16 + i, 17 + i, 33)
    for i in range(16):
        k(f"v_mul_f32 v{16 + i}, v{16 + i}, v35")
    for i in range(8):
        k(f"v_cvt_pk_bf16_f32 v{4 + i}, v{16 + 2 * i}, v{17 + 2 * i}")
    k(f"buffer_store_dwordx4 v[4:7], v3, {sr(S_['srdO'], 4)}, s{S_['t0']} offen")
    k(f"buffer_store_dwordx4 v[8:11], v3, {sr(S_['srdO'], 4)}, s{S_['t0']} offen offset:1024")
    k("s_endpgm")
    k.label(Lgate)
    load_ptr(k, 4, "A_x")
    load_ptr(k, 6, "gate_w")
    k("s_waitcnt lgkmcnt(0)")
    srd(k, S_['srdA'], 4, S * D * 2)
    srd(k, S_['srdB'], 6, D * 2)
    srd(k, S_['srdO'], S_['ws'], S * 4, WS_G)
    k(f"s_sub_u32 s{S_['t0']}, s2, 256")
    k(f"s_lshl_b32 s{S_['t0']}, s{S_['t0']}, 3")
    k(f"s_add_u32 s{S_['t0']}, s{S_['t0']}, s{S_['w']}")
    k(f"s_lshl_b32 s{S_['t1']}, s{S_['t0']}, 11")
    k(f"buffer_load_dwordx4 v[4:7], v3, {sr(S_['srdA'], 4)}, s{S_['t1']} offen")
    k(f"buffer_load_dwordx4 v[8:11], v3, {sr(S_['srdA'], 4)}, s{S_['t1']} offen offset:1024")
    k(f"buffer_load_dwordx4 v[40:43], v3, {sr(S_['srdB'], 4)}, 0 offen")
    k(f"buffer_load_dwordx4 v[44:47], v3, {sr(S_['srdB'], 4)}, 0 offen offset:1024")
    k("s_waitcnt vmcnt(0)")
    unpack8(k, 4, 16); unpack8(k, 8, 24)
    unpack8(k, 40, 48); unpack8(k, 44, 56)
    for i in range(16):
        k(f"v_mul_f32 v{16 + i}, v{16 + i}, v{48 + i}")
    for i in range(0, 16, 2):
        bf16r2(k, 16 + i, 17 + i, 33)
    k("v_add_f32 v32, v16, v17")
    for i in range(2, 16):
        k(f"v_add_f32 v32, v32, v{16 + i}")
    allreduce(k, 32, 33)
    bf16r1(k, 32, 33)
    k(f"v_mul_f32 v32, {f32hex(-LOG2E)}, v32")
    k("v_exp_f32 v32, v32")
    k("v_add_f32 v32, 1.0, v32")
    k("v_rcp_f32 v32, v32")
    bf16r1(k, 32, 33)
    k(f"s_lshl_b32 s{S_['t1']}, s{S_['t0']}, 2")
    k("v_cmp_eq_u32 vcc, 0, v1")
    k("s_and_saveexec_b64 s[56:57], vcc")
    k("v_mov_b32 v34, 0")
    k(f"buffer_store_dword v32, v34, {sr(S_['srdO'], 4)}, s{S_['t1']} offen")
    k.label(Lend)
    k("s_endpgm")
    return k, 64, 512, 0


def build(kernels, path):
    head = HEADER
    body, descs = [], []
    for kk_ in kernels:
        k, vg, grid, lds = kk_[:4]
        blk = kk_[4] if len(kk_) > 4 else 512
        head += f"; @launch kernel={k.name} grid=({grid},1,1) block=({blk},1,1) lds={lds}\n"
        b, d = kernel_text(k, vg)
        body.append(b); descs.append(d)
    txt = head + '.amdgcn_target "amdgcn-amd-amdhsa--gfx950"\n' + "\n".join(body) + "\n" + "\n".join(descs) + "\n"
    open(path, "w").write(txt)
    return txt


if __name__ == "__main__":
    out = sys.argv[1] if len(sys.argv) > 1 else "test_all.s"
    import launches
    build(launches.all_kernels(), out)
    print("wrote", out)
```

```python
import os
from gen import *
import gen


def gemm_setup(k, g, cfg, a_ptr, a_off, a_bytes, b_name, b_bytes, o_off, o_bytes, lda, ldb, ksteps, koffA0=0, adv=None, bmap=None):
    S_ = SG
    load_ptr(k, S_['ws'], "ws")
    load_ptr(k, 6, b_name)
    if a_ptr != "ws":
        load_ptr(k, 4, a_ptr)
    k("s_waitcnt lgkmcnt(0)")
    if a_ptr == "ws":
        srd(k, S_['srdA'], S_['ws'], a_bytes, a_off)
    else:
        srd(k, S_['srdA'], 4, a_bytes)
    srd(k, S_['srdB'], 6, b_bytes)
    if o_off is not None:
        srd(k, S_['srdO'], S_['ws'], o_bytes, o_off)
    k(f"s_mov_b32 s{S_['koffA']}, {koffA0}")
    k(f"s_mov_b32 s{S_['koffB']}, 0")
    k(f"s_mov_b32 s{S_['cnt']}, {ksteps}")
    g.prologue_common()
    g.loader(lda, ldb, S_['tm'], S_['tn'], adv or std_adv(ldb), bmap)
    g.prologue_addr(lda, ldb, S_['tm'], S_['tn'])
    g.zero_acc()


def phi_softmax2(k, T, P8, N8, R, t):
    mx, mn, t0 = t, t + 1, t + 2
    na, nb = t + 4, t + 6
    k(f"v_max3_f32 v{mx}, v{T}, v{T + 1}, v{T + 2}")
    k(f"v_min3_f32 v{mn}, v{T}, v{T + 1}, v{T + 2}")
    for i in range(3, 15, 2):
        k(f"v_max3_f32 v{mx}, v{mx}, v{T + i}, v{T + i + 1}")
        k(f"v_min3_f32 v{mn}, v{mn}, v{T + i}, v{T + i + 1}")
    k(f"v_max_f32 v{mx}, v{mx}, v{T + 15}")
    k(f"v_min_f32 v{mn}, v{mn}, v{T + 15}")
    half_reduce32(k, mx, t0, "max")
    half_reduce32(k, mn, t0, "min")
    k(f"v_mul_f32 v{na}, {f32hex(-LOG2E)}, v{mx}")
    k(f"v_mul_f32 v{nb}, {f32hex(LOG2E)}, v{mn}")
    k(f"v_mov_b32 v{na + 1}, v{na}")
    k(f"v_mov_b32 v{nb + 1}, v{nb}")
    P, N = R, R + 16
    for i in range(0, 16, 2):
        k(f"v_pk_fma_f32 {vr(P + i, 2)}, {vr(T + i, 2)}, s[58:59], {vr(na, 2)}")
        k(f"v_pk_fma_f32 {vr(N + i, 2)}, {vr(T + i, 2)}, s[58:59], {vr(nb, 2)} neg_lo:[1,0,0] neg_hi:[1,0,0]")
    for i in range(16):
        k(f"v_exp_f32 v{P + i}, v{P + i}")
        k(f"v_exp_f32 v{N + i}, v{N + i}")
    k(f"v_pk_add_f32 {vr(na, 2)}, {vr(P, 2)}, {vr(P + 2, 2)}")
    k(f"v_pk_add_f32 {vr(nb, 2)}, {vr(N, 2)}, {vr(N + 2, 2)}")
    for i in range(4, 16, 2):
        k(f"v_pk_add_f32 {vr(na, 2)}, {vr(na, 2)}, {vr(P + i, 2)}")
        k(f"v_pk_add_f32 {vr(nb, 2)}, {vr(nb, 2)}, {vr(N + i, 2)}")
    k(f"v_add_f32 v{mx}, v{na}, v{na + 1}")
    k(f"v_add_f32 v{mn}, v{nb}, v{nb + 1}")
    half_reduce32(k, mx, t0, "add")
    half_reduce32(k, mn, t0, "add")
    k(f"v_rcp_f32 v{na}, v{mx}")
    k(f"v_rcp_f32 v{nb}, v{mn}")
    k(f"v_mov_b32 v{na + 1}, v{na}")
    k(f"v_mov_b32 v{nb + 1}, v{nb}")
    for i in range(0, 16, 2):
        k(f"v_pk_mul_f32 {vr(P + i, 2)}, {vr(P + i, 2)}, {vr(na, 2)}")
        k(f"v_pk_mul_f32 {vr(N + i, 2)}, {vr(N + i, 2)}, {vr(nb, 2)}")
    for i in range(8):
        k(f"v_cvt_pk_bf16_f32 v{P8 + i}, v{P + 2 * i}, v{P + 2 * i + 1}")
        k(f"v_cvt_pk_bf16_f32 v{N8 + i}, v{N + 2 * i}, v{N + 2 * i + 1}")


NPART = 8


def kv_epilogue(g, AF):
    k, c, S_ = g.k, g.cfg, SG
    lane, l31, h, pw, vw, a_phi, a_v = 120, 121, 122, 123, 124, 125, 126
    KB = 64
    WSZ = 8192
    k("s_barrier")
    k(f"v_and_b32 v{lane}, 63, v{g.vtid}")
    k(f"v_mov_b32 v127, v{g.vtid}")
    k(f"v_and_b32 v{l31}, 31, v{lane}")
    k(f"v_lshrrev_b32 v{h}, 5, v{lane}")
    k(f"s_mul_i32 s{S_['t2']}, s{S_['w']}, {WSZ}")
    k(f"s_mov_b32 s58, {f32hex(LOG2E)}")
    k(f"s_mov_b32 s59, {f32hex(LOG2E)}")
    tr_addr_small(k, lane, a_phi, 112, 128)
    tr_addr_small(k, lane, a_v, 112, 64)
    k(f"v_add_u32 v{a_phi}, s{S_['t2']}, v{a_phi}")
    k(f"v_add_u32 v{a_v}, s{S_['t2']}, v{a_v}")
    k(f"v_lshlrev_b32 v{pw}, 7, v{l31}")
    k(f"v_lshl_add_u32 v{pw}, v{h}, 3, v{pw}")
    k(f"v_add_u32 v{pw}, s{S_['t2']}, v{pw}")
    k(f"v_lshlrev_b32 v{vw}, 6, v{l31}")
    k(f"v_lshl_add_u32 v{vw}, v{h}, 3, v{vw}")
    k(f"v_add_u32 v{vw}, s{S_['t2']}, v{vw}")
    for rb in range(2):
        a = g.accr(0, rb)
        for i in range(8):
            k(f"v_cvt_pk_bf16_f32 v{KB + rb * 8 + i}, v{a + 2 * i}, v{a + 2 * i + 1}")
    VP = 80
    for rb in range(2):
        a = g.accr(1, rb)
        for i in range(8):
            k(f"v_cvt_pk_bf16_f32 v{VP + i}, v{a + 2 * i}, v{a + 2 * i + 1}")
        for q in range(4):
            k(f"ds_write_b64 v{vw}, {vr(VP + 2 * q, 2)} offset:{4096 + rb * 2048 + q * 16}")
    AZ, AKV = 0, 128
    T, R, P8, N8, TMP = 32, 80, 48, 56, 112
    PF, VF, ones = 32, 40, 80
    k("s_waitcnt vmcnt(0)")
    stamp(k, 4)
    for rb in range(2):
        k(f"v_mfma_f32_32x32x16_bf16 {vr(T, 16)}, {vr(AF, 4)}, {vr(KB + rb * 8, 4)}, 0")
        k(f"v_mfma_f32_32x32x16_bf16 {vr(T, 16)}, {vr(AF + 4, 4)}, {vr(KB + rb * 8 + 4, 4)}, {vr(T, 16)}")
        for i in range(0, 16, 2):
            bf16r2(k, T + i, T + i + 1, TMP)
        phi_softmax2(k, T, P8, N8, R, TMP)
        for i in range(4):
            k(f"v_mov_b32 v{ones + i}, 0x3f803f80")
        for q in range(4):
            k(f"ds_write_b64 v{pw}, {vr(P8 + 2 * q, 2)} offset:{q * 16}")
            k(f"ds_write_b64 v{pw}, {vr(N8 + 2 * q, 2)} offset:{64 + q * 16}")
        k("s_waitcnt lgkmcnt(0)")
        for kk in range(2):
            for fb in range(2):
                for j in range(2):
                    k(f"ds_read_b64_tr_b16 {vr(PF + fb * 4 + j * 2, 2)}, v{a_phi} offset:{(kk * 16 + j * 4) * 128 + fb * 64}")
            for j in range(2):
                k(f"ds_read_b64_tr_b16 {vr(VF + j * 2, 2)}, v{a_v} offset:{4096 + rb * 2048 + (kk * 16 + j * 4) * 64}")
            k("s_waitcnt lgkmcnt(0)")
            for fb in range(2):
                first = (rb == 0 and kk == 0)
                k(f"v_mfma_f32_32x32x16_bf16 {vr(AKV + fb * 16, 16)}, {vr(PF + fb * 4, 4)}, {vr(VF, 4)}, {'0' if first else vr(AKV + fb * 16, 16)}")
                k(f"v_mfma_f32_32x32x16_bf16 {vr(AZ + fb * 16, 16)}, {vr(PF + fb * 4, 4)}, {vr(ones, 4)}, {'0' if first else vr(AZ + fb * 16, 16)}")
    stamp(k, 5)
    k("s_barrier")
    RED, ZRED = 0, 65536
    ra = 32
    k(f"v_lshlrev_b32 v{ra}, 2, v{l31}")
    k(f"v_lshl_add_u32 v{ra}, v{h}, 9, v{ra}")
    k(f"s_lshl_b32 s{S_['t0']}, s{S_['w']}, 13")
    k(f"v_add_u32 v{ra}, s{S_['t0']}, v{ra}")
    for fb in range(2):
        for v in range(16):
            F = fb * 32 + (v & 3) + 8 * (v >> 2)
            k(f"ds_write_b32 v{ra}, v{AKV + fb * 16 + v} offset:{RED + F * 128}")
    za = 33
    k(f"v_lshlrev_b32 v{za}, 4, v{h}")
    k(f"s_lshl_b32 s{S_['t0']}, s{S_['w']}, 8")
    k(f"v_add_u32 v{za}, s{S_['t0']}, v{za}")
    k(f"v_add_u32 v{za}, {ZRED}, v{za}")
    k(f"v_cmp_eq_u32 vcc, 0, v{l31}")
    k("s_and_saveexec_b64 s[56:57], vcc")
    for fb in range(2):
        for v in range(16):
            F = fb * 32 + (v & 3) + 8 * (v >> 2)
            k(f"ds_write_b32 v{za}, v{AZ + fb * 16 + v} offset:{F * 4}")
    k("s_mov_b64 exec, s[56:57]")
    k("s_waitcnt lgkmcnt(0)")
    k("s_barrier")
    stamp(k, 6)
    tid = 127
    hd, tp = 34, 35
    k(f"v_lshrrev_b32 v{hd}, 8, v{tid}")
    k(f"v_and_b32 v{tp}, 255, v{tid}")
    so = 36
    k(f"s_lshl_b32 s{S_['t0']}, s{S_['tn']}, 4")
    k(f"s_add_u32 s{S_['t0']}, s{S_['t0']}, s{S_['tm']}")
    k(f"s_mul_i32 s{S_['t0']}, s{S_['t0']}, {KVP_BYTES}")
    k(f"v_mul_u32_u24 v{so}, {8 * KVP_BYTES}, v{hd}")
    zs = 37
    k(f"v_mov_b32 v{zs}, v{so}")
    k(f"v_lshl_add_u32 v{so}, v{tp}, 4, v{so}")
    for it in range(2):
        F0, x, ad = 40, 41, 42
        k(f"v_lshrrev_b32 v{F0}, 7, v{tp}")
        k(f"v_lshlrev_b32 v{F0}, 4, v{F0}")
        if it:
            k(f"v_add_u32 v{F0}, 32, v{F0}")
        k(f"v_and_b32 v{x}, 1, v{tp}")
        k(f"v_lshl_add_u32 v{F0}, v{x}, 3, v{F0}")
        k(f"v_bfe_u32 v{x}, v{tp}, 6, 1")
        k(f"v_lshl_add_u32 v{F0}, v{x}, 2, v{F0}")
        k(f"v_lshlrev_b32 v{ad}, 7, v{F0}")
        k(f"v_bfe_u32 v{x}, v{tp}, 1, 5")
        k(f"v_lshl_add_u32 v{ad}, v{x}, 2, v{ad}")
        k(f"v_lshl_add_u32 v{ad}, v{hd}, 13, v{ad}")
        for wm in range(4):
            for i in range(4):
                k(f"ds_read_b32 v{48 + wm * 4 + i}, v{ad} offset:{RED + wm * 16384 + i * 128}")
        k("s_waitcnt lgkmcnt(0)")
        for i in range(4):
            k(f"v_add_f32 v{48 + i}, v{48 + i}, v{52 + i}")
            k(f"v_add_f32 v{56 + i}, v{56 + i}, v{60 + i}")
            k(f"v_add_f32 v{44 + i}, v{48 + i}, v{56 + i}")
        if it:
            k(f"v_add_u32 v{so}, 4096, v{so}")
        k(f"buffer_store_dwordx4 v[44:47], v{so}, {sr(S_['srdO'], 4)}, s{S_['t0']} offen")
    k(f"v_cmp_gt_u32 vcc, 128, v{tid}")
    k("s_and_saveexec_b64 s[56:57], vcc")
    Lz = k.newlabel("kvz")
    k(f"s_cbranch_execz {Lz}")
    k(f"v_lshrrev_b32 v{hd}, 6, v{tid}")
    k(f"v_and_b32 v{tp}, 63, v{tid}")
    k(f"v_lshlrev_b32 v40, 2, v{tp}")
    k(f"v_lshl_add_u32 v40, v{hd}, 8, v40")
    k(f"v_add_u32 v40, {ZRED}, v40")
    for wm in range(4):
        k(f"ds_read_b32 v{48 + wm}, v40 offset:{wm * 512}")
    k("s_waitcnt lgkmcnt(0)")
    k("v_add_f32 v48, v48, v49")
    k("v_add_f32 v50, v50, v51")
    k("v_add_f32 v48, v48, v50")
    k(f"v_lshrrev_b32 v41, 4, v{tp}")
    k(f"v_bfe_u32 v42, v{tp}, 2, 1")
    k("v_lshl_add_u32 v41, v41, 1, v42")
    k("v_lshlrev_b32 v41, 3, v41")
    k(f"v_bfe_u32 v42, v{tp}, 3, 1")
    k("v_lshl_add_u32 v41, v42, 2, v41")
    k(f"v_and_b32 v42, 3, v{tp}")
    k("v_add_u32 v41, v41, v42")
    k("v_lshlrev_b32 v41, 2, v41")
    k(f"v_mul_u32_u24 v42, {8 * KVP_BYTES}, v{hd}")
    k("v_add_u32 v41, v41, v42")
    k("v_add_u32 v41, 8192, v41")
    k(f"buffer_store_dword v48, v41, {sr(S_['srdO'], 4)}, s{S_['t0']} offen")
    k.label(Lz)
    k("s_waitcnt vmcnt(0)") if os.environ.get("STAMP") else None
    stamp(k, 3)
    k("s_endpgm")


def gen_l1():
    cfg = GemmCfg()
    k = Kernel("l1_kernel")
    S_ = SG
    g = GemmGen(k, cfg, S_)
    AF = 160
    assert g.tmp + 8 <= AF
    nt = (S // cfg.BM) * 32
    Lend = k.newlabel("end"); Lw1 = k.newlabel("w1"); Lkv = k.newlabel("kv")
    k(f"s_cmp_ge_u32 s2, {nt}")
    k(f"s_cbranch_scc1 {Lend}")
    stamp(k, 0)
    xcd_decode(k)
    xcd_tile(k, 2, 4, 8)
    k(f"s_cmp_ge_u32 s{S_['tn']}, 24")
    k(f"s_cbranch_scc1 {Lw1}")
    k(f"s_cmp_ge_u32 s{S_['tn']}, 8")
    k(f"s_cbranch_scc1 {Lkv}")
    gemm_setup(k, g, cfg, "A_x", 0, S * D * 2, "wqkv", D * 3072 * 2, WS_QKV, S * D * 2, 2048, 6144, D // 64)
    stamp(k, 1)
    g.mainloop()
    stamp(k, 2)
    epilogue_lds(g, 2048)
    k("s_waitcnt vmcnt(0)") if os.environ.get("STAMP") else None
    stamp(k, 3)
    k("s_endpgm")
    k.label(Lkv)
    k(f"s_sub_u32 s{S_['tn']}, s{S_['tn']}, 8")
    load_ptr(k, 60, "w_phi")
    gemm_setup(k, g, cfg, "A_x", 0, S * D * 2, "wqkv", D * 3072 * 2, WS_KV, 32 * NPART * KVP_BYTES, 2048, 6144, D // 64, bmap='kv')
    srd(k, S_['srdX'], 60, 32 * 32 * 32 * 2)
    t = g.tmp
    k(f"v_and_b32 v{t}, 31, v{g.vtid}")
    k(f"v_bfe_u32 v{t + 1}, v{g.vtid}, 5, 1")
    k(f"v_lshlrev_b32 v{t}, 1, v{t}")
    k(f"v_lshl_add_u32 v{t}, v{t + 1}, 8, v{t}")
    k(f"s_lshl_b32 s{S_['t0']}, s{S_['tn']}, 1")
    k(f"s_add_u32 s{S_['t0']}, s{S_['t0']}, s{S_['wn']}")
    k(f"s_lshl_b32 s{S_['t0']}, s{S_['t0']}, 11")
    LT = g.fx[0]
    for kk in range(2):
        for e in range(8):
            doff = 8 * (2 * kk + (e >> 2)) + (e & 3)
            k(f"buffer_load_ushort v{LT + kk * 8 + e}, v{t}, {sr(S_['srdX'], 4)}, s{S_['t0']} offen offset:{doff * 64}")
    k("s_waitcnt vmcnt(0)")
    for i in range(8):
        k(f"v_lshl_or_b32 v{AF + i}, v{LT + 2 * i + 1}, 16, v{LT + 2 * i}")
    stamp(k, 1)
    g.mainloop()
    stamp(k, 2)
    kv_epilogue(g, AF)
    k.label(Lw1)
    k(f"s_sub_u32 s{S_['tn']}, s{S_['tn']}, 24")
    gemm_setup(k, g, cfg, "ws", WS_XN1, S * D * 2, "w1", D * D * 2, WS_H, S * D * 2, 2048, 2048, D // 64)
    gelu_consts(k)
    g.mainloop()

    def hook(g, ctx, cb, rb, a):
        gelu_block(k, a, 16, ctx['free'])
    free = epilogue_lds(g, 2048, hook=hook)
    k.label(Lend)
    k("s_endpgm")
    return k, 168, nt, cfg.lds, cfg.nthreads


def w2_role(k, g, cfg, base):
    S_ = SG
    tile_decode(k, 1024 // cfg.BN, base)
    sh = [-1, 1, -2, 2]
    def adv(k):
        k(f"s_add_u32 s{S_['koffA']}, s{S_['koffA']}, 128")
        k(f"s_add_u32 s{S_['koffB']}, s{S_['koffB']}, {64 * 2048}")
        k(f"s_add_u32 s{S_['t6']}, s{S_['t6']}, 1")
        for q in range(1, 4):
            d = (sh[q] - sh[q - 1]) * 2048
            k(f"s_cmp_eq_u32 s{S_['t6']}, {4 * q}")
            k(f"s_cselect_b32 s{S_['t3']}, {d & 0xffffffff}, 0")
            k(f"s_add_u32 s{S_['koffA']}, s{S_['koffA']}, s{S_['t3']}")
    k(f"s_mov_b32 s{S_['t6']}, 0")
    gemm_setup(k, g, cfg, "ws", WS_HG, 4096 + S * D * 2 + 4096, "w2", D * D * 2, WS_X1, S * D * 2, 2048, 2048, D // 64,
               koffA0=(2 + sh[0]) * 2048, adv=adv)
    load_ptr(k, 4, "A_x")
    k("s_waitcnt lgkmcnt(0)")
    srd(k, S_['srdX'], 4, S * D * 2)
    srd(k, S_['srdY'], S_['ws'], S * 128, WS_ST)
    g.mainloop()

    st = {}
    def pre(g, ctx):
        f = ctx['free']
        st['xoff'] = f; st['xr'] = f + 4; st['s1'] = f + 12; st['s2'] = f + 13; st['t'] = f + 14; st['so'] = f + 15
        k(f"v_add_u32 v{f}, s{ctx['row0']}, v{ctx['l31']}")
        k(f"v_lshlrev_b32 v{f}, 11, v{f}")
        k(f"v_lshl_add_u32 v{f}, v{ctx['h']}, 3, v{f}")
        k(f"s_lshl_b32 s{S_['t0']}, s{ctx['col0']}, 1")
        k(f"v_add_u32 v{f}, s{S_['t0']}, v{f}")
        XR = st['XR'] = 128
        for rb in range(cfg.MB):
            for cb in range(cfg.NB):
                for q in range(4):
                    k(f"buffer_load_dwordx2 {vr(XR + ((cb * cfg.MB + rb) * 4 + q) * 2, 2)}, v{f}, {sr(S_['srdX'], 4)}, 0 offen offset:{cb * 64 + q * 16}")
            if rb != cfg.MB - 1:
                k(f"v_add_u32 v{f}, {32 * 2048}, v{f}")
        so = st['so']
        k(f"v_add_u32 v{so}, s{ctx['row0']}, v{ctx['l31']}")
        k(f"v_lshlrev_b32 v{so}, 7, v{so}")
        k(f"s_lshr_b32 s{S_['t0']}, s{ctx['col0']}, 3")
        k(f"v_add_u32 v{so}, s{S_['t0']}, v{so}")

    def hook(g, ctx, cb, rb, a):
        xr, t = st['XR'] + (cb * cfg.MB + rb) * 8, st['t']
        if cb == 0:
            k(f"v_mov_b32 v{st['s1']}, 0")
            k(f"v_mov_b32 v{st['s2']}, 0")
        for i in range(0, 16, 2):
            bf16r2(k, a + i, a + i + 1, t)
        if cb == 0 and rb == 0:
            k("s_waitcnt vmcnt(0)")
        for q in range(4):
            for j in range(2):
                i = a + 4 * q + 2 * j
                k(f"v_lshlrev_b32 v{t}, 16, v{xr + 2 * q + j}")
                k(f"v_add_f32 v{i}, v{i}, v{t}")
                k(f"v_and_b32 v{t}, 0xffff0000, v{xr + 2 * q + j}")
                k(f"v_add_f32 v{i + 1}, v{i + 1}, v{t}")
        for i in range(0, 16, 2):
            bf16r2(k, a + i, a + i + 1, t)
        for i in range(16):
            k(f"v_add_f32 v{st['s1']}, v{st['s1']}, v{a + i}")
            k(f"v_fmac_f32 v{st['s2']}, v{a + i}, v{a + i}")
        if cb == cfg.NB - 1:
            half_reduce32(k, st['s1'], t, "add")
            half_reduce32(k, st['s2'], t, "add")
            k(f"v_cmp_gt_u32 vcc, 32, v{ctx['lane']}")
            k("s_and_saveexec_b64 s[56:57], vcc")
            so = st['so']
            k(f"buffer_store_dwordx2 {vr(st['s1'], 2)}, v{so}, {sr(S_['srdY'], 4)}, 0 offen")
            k("s_mov_b64 exec, s[56:57]")
            k(f"v_add_u32 v{so}, 4096, v{so}")
    epilogue_lds(g, 2048, hook=hook, pre=pre)
    k("s_endpgm")


def cs3_role(k, base):
    S_ = SG
    load_ptr(k, S_['ws'], "ws")
    load_ptr(k, 6, "w3")
    k("s_waitcnt lgkmcnt(0)")
    srd(k, S_['srdB'], 6, D * 3584 * 2)
    srd(k, S_['srdO'], S_['ws'], 3584 * 4, WS_CS3)
    k(f"s_sub_u32 s{S_['id']}, s{S_['jj']}, {base}")
    k(f"s_lshl_b32 s{S_['id']}, s{S_['id']}, 3")
    k(f"s_add_u32 s{S_['id']}, s{S_['id']}, s{S_['xx']}")
    k("v_cmp_gt_u32 vcc, 512, v0")
    k("s_and_saveexec_b64 s[56:57], vcc")
    Lx = k.newlabel("csx")
    k(f"s_cbranch_execz {Lx}")
    k("v_and_b32 v1, 15, v0")
    k("v_lshrrev_b32 v2, 4, v0")
    k(f"s_mov_b32 s{S_['t0']}, {32 * 7168}")
    k(f"v_mul_lo_u32 v3, v2, s{S_['t0']}")
    k("v_lshl_add_u32 v3, v1, 4, v3")
    k(f"s_lshl_b32 s{S_['t1']}, s{S_['id']}, 8")
    for i in range(8):
        k(f"v_mov_b32 v{8 + i}, 0")
    for j in range(32):
        k(f"buffer_load_dwordx4 {vr(40 + 4 * j, 4)}, v3, {sr(S_['srdB'], 4)}, s{S_['t1']} offen")
        k(f"v_add_u32 v3, 7168, v3")
    for j in range(32):
        k(f"s_waitcnt vmcnt({31 - j})")
        unpack8(k, 40 + 4 * j, 32)
        for i in range(8):
            k(f"v_add_f32 v{8 + i}, v{8 + i}, v{32 + i}")
    k("v_lshlrev_b32 v4, 9, v2")
    k("v_lshl_add_u32 v4, v1, 5, v4")
    k("ds_write_b128 v4, v[8:11]")
    k("ds_write_b128 v4, v[12:15] offset:16")
    k("s_waitcnt lgkmcnt(0)")
    k.label(Lx)
    k("s_mov_b64 exec, s[56:57]")
    k("s_barrier")
    k("v_cmp_gt_u32 vcc, 128, v0")
    k("s_and_saveexec_b64 s[56:57], vcc")
    Ly = k.newlabel("csy")
    k(f"s_cbranch_execz {Ly}")
    k("v_lshlrev_b32 v4, 2, v0")
    k("v_mov_b32 v5, 0")
    for r in range(32):
        k(f"ds_read_b32 v6, v4 offset:{r * 512}")
        k("s_waitcnt lgkmcnt(0)")
        k("v_add_f32 v5, v5, v6")
    k(f"s_lshl_b32 s{S_['t1']}, s{S_['id']}, 9")
    k(f"buffer_store_dword v5, v4, {sr(S_['srdO'], 4)}, s{S_['t1']} offen")
    k.label(Ly)
    k("s_endpgm")


KVP_BYTES = 8192 + 256


def tr_addr_small(k, lane, dst, t, row_bytes, colblk_bytes=0):
    g, r_, c_ = t, t + 1, t + 2
    k(f"v_lshrrev_b32 v{g}, 4, v{lane}")
    k(f"v_and_b32 v{r_}, 15, v{lane}")
    k(f"v_lshrrev_b32 v{r_}, 2, v{r_}")
    k(f"v_and_b32 v{c_}, 3, v{lane}")
    k(f"v_lshrrev_b32 v{dst}, 1, v{g}")
    k(f"v_lshlrev_b32 v{dst}, 3, v{dst}")
    k(f"v_add_u32 v{dst}, v{dst}, v{r_}")
    k(f"v_mul_u32_u24 v{dst}, {row_bytes}, v{dst}")
    k(f"v_and_b32 v{g}, 1, v{g}")
    k(f"v_lshl_add_u32 v{dst}, v{g}, 5, v{dst}")
    k(f"v_lshl_add_u32 v{dst}, v{c_}, 3, v{dst}")


def phi_softmax(k, T, P, N, t):
    mx, mn, t0, t1 = t, t + 1, t + 2, t + 3
    k(f"v_max3_f32 v{mx}, v{T}, v{T + 1}, v{T + 2}")
    k(f"v_min3_f32 v{mn}, v{T}, v{T + 1}, v{T + 2}")
    for i in range(3, 15, 2):
        k(f"v_max3_f32 v{mx}, v{mx}, v{T + i}, v{T + i + 1}")
        k(f"v_min3_f32 v{mn}, v{mn}, v{T + i}, v{T + i + 1}")
    k(f"v_max_f32 v{mx}, v{mx}, v{T + 15}")
    k(f"v_min_f32 v{mn}, v{mn}, v{T + 15}")
    half_reduce32(k, mx, t0, "max")
    half_reduce32(k, mn, t0, "min")
    for i in range(16):
        k(f"v_sub_f32 v{N + i}, v{mn}, v{T + i}")
        k(f"v_mul_f32 v{N + i}, {f32hex(LOG2E)}, v{N + i}")
        k(f"v_exp_f32 v{N + i}, v{N + i}")
        k(f"v_sub_f32 v{P + i}, v{T + i}, v{mx}")
        k(f"v_mul_f32 v{P + i}, {f32hex(LOG2E)}, v{P + i}")
        k(f"v_exp_f32 v{P + i}, v{P + i}")
    k(f"v_add_f32 v{mx}, v{P}, v{P + 1}")
    k(f"v_add_f32 v{mn}, v{N}, v{N + 1}")
    for i in range(2, 16):
        k(f"v_add_f32 v{mx}, v{mx}, v{P + i}")
        k(f"v_add_f32 v{mn}, v{mn}, v{N + i}")
    half_reduce32(k, mx, t0, "add")
    half_reduce32(k, mn, t0, "add")
    k(f"v_rcp_f32 v{mx}, v{mx}")
    k(f"v_rcp_f32 v{mn}, v{mn}")
    for i in range(16):
        k(f"v_mul_f32 v{P + i}, v{P + i}, v{mx}")
        k(f"v_mul_f32 v{N + i}, v{N + i}, v{mn}")


def kside_role(k, base):
    S_ = SG
    Lx = k.newlabel("ksx")
    load_ptr(k, S_['ws'], "ws")
    load_ptr(k, 6, "w_phi")
    k("v_lshrrev_b32 v1, 6, v0")
    k(f"v_readfirstlane_b32 s{S_['w']}, v1")
    k(f"s_cmp_ge_u32 s{S_['w']}, 8")
    k(f"s_cbranch_scc1 {Lx}")
    k(f"s_sub_u32 s{S_['id']}, s{S_['jj']}, {base}")
    k(f"s_lshl_b32 s{S_['id']}, s{S_['id']}, 3")
    k(f"s_add_u32 s{S_['id']}, s{S_['id']}, s{S_['xx']}")
    k(f"s_mov_b32 s{S_['t5']}, s{S_['id']}")
    k(f"s_and_b32 s{S_['t6']}, s{S_['id']}, 1")
    k(f"s_lshr_b32 s{S_['id']}, s{S_['id']}, 1")
    k("s_waitcnt lgkmcnt(0)")
    srd(k, S_['srdA'], S_['ws'], S * 3072 * 2, WS_QKV)
    srd(k, S_['srdB'], 6, 32 * 32 * 32 * 2)
    srd(k, S_['srdO'], S_['ws'], 64 * KVP_BYTES, WS_KV)
    lane = 2
    k(f"v_and_b32 v{lane}, 63, v0")
    WREG = 4096
    WSZ = 4096 + 8192
    k("v_lshlrev_b32 v3, 4, v2")
    Lnw = k.newlabel("nw")
    k(f"s_cmp_lg_u32 s{S_['w']}, 0")
    k(f"s_cbranch_scc1 {Lnw}")
    k(f"s_lshl_b32 s{S_['t0']}, s{S_['id']}, 11")
    k("s_mov_b32 m0, 0")
    k(f"buffer_load_dwordx4 v3, {sr(S_['srdB'], 4)}, s{S_['t0']} offen lds")
    k(f"s_add_u32 s{S_['t0']}, s{S_['t0']}, 1024")
    k("s_mov_b32 m0, 1024")
    k(f"buffer_load_dwordx4 v3, {sr(S_['srdB'], 4)}, s{S_['t0']} offen lds")
    k("s_waitcnt vmcnt(0)")
    k.label(Lnw)
    a_w, a_phi, a_v = 4, 5, 6
    tr_addr_small(k, lane, a_w, 10, 64)
    tr_addr_small(k, lane, a_phi, 10, 128)
    tr_addr_small(k, lane, a_v, 10, 64)
    k(f"s_mul_i32 s{S_['t2']}, s{S_['w']}, {WSZ}")
    k(f"s_add_u32 s{S_['t2']}, s{S_['t2']}, {WREG}")
    k(f"v_add_u32 v{a_phi}, s{S_['t2']}, v{a_phi}")
    k(f"v_add_u32 v{a_v}, s{S_['t2']}, v{a_v}")
    k(f"v_add_u32 v{a_v}, 4096, v{a_v}")
    l31, h = 7, 8
    k(f"v_and_b32 v{l31}, 31, v{lane}")
    k(f"v_lshrrev_b32 v{h}, 5, v{lane}")
    k(f"s_lshl_b32 s{S_['t0']}, s{S_['t6']}, 10")
    k(f"s_lshl_b32 s{S_['t1']}, s{S_['w']}, 7")
    k(f"s_add_u32 s{S_['t4']}, s{S_['t0']}, s{S_['t1']}")
    koff = 9
    k(f"v_add_u32 v{koff}, s{S_['t4']}, v{l31}")
    k(f"s_mov_b32 s{S_['t1']}, 6144")
    k(f"v_mul_lo_u32 v{koff}, v{koff}, s{S_['t1']}")
    k(f"v_lshl_add_u32 v{koff}, v{h}, 4, v{koff}")
    k(f"s_lshl_b32 s{S_['t0']}, s{S_['id']}, 6")
    k(f"s_add_u32 s{S_['t0']}, s{S_['t0']}, 2048")
    k(f"v_add_u32 v{koff}, s{S_['t0']}, v{koff}")
    voff = 10
    k(f"v_lshrrev_b32 v{voff}, 2, v{lane}")
    k(f"v_add_u32 v{voff}, s{S_['t4']}, v{voff}")
    k(f"v_mul_lo_u32 v{voff}, v{voff}, s{S_['t1']}")
    k(f"v_and_b32 v11, 3, v{lane}")
    k(f"v_lshl_add_u32 v{voff}, v11, 4, v{voff}")
    k(f"s_add_u32 s{S_['t0']}, s{S_['t0']}, 2048")
    k(f"v_add_u32 v{voff}, s{S_['t0']}, v{voff}")
    pw = 11
    k(f"v_lshlrev_b32 v{pw}, 7, v{l31}")
    k(f"v_lshl_add_u32 v{pw}, v{h}, 3, v{pw}")
    k(f"v_add_u32 v{pw}, s{S_['t2']}, v{pw}")
    ones = 24
    for i in range(4):
        k(f"v_mov_b32 v{ones + i}, 0x3f803f80")
    KF = 28
    for b in range(4):
        k(f"buffer_load_dwordx4 {vr(KF + 8 * b, 4)}, v{koff}, {sr(S_['srdA'], 4)}, 0 offen")
        k(f"buffer_load_dwordx4 {vr(KF + 8 * b + 4, 4)}, v{koff}, {sr(S_['srdA'], 4)}, 0 offen offset:32")
        if b != 3:
            k(f"v_add_u32 v{koff}, {32 * 6144}, v{koff}")
    for b in range(8):
        k(f"s_add_u32 m0, s{S_['t2']}, {4096 + 1024 * b}")
        k(f"buffer_load_dwordx4 v{voff}, {sr(S_['srdA'], 4)}, 0 offen lds")
        if b != 7:
            k(f"v_add_u32 v{voff}, {16 * 6144}, v{voff}")
    T, N, TMP = 60, 76, 92
    P = T
    PF, VF = 68, 84
    AKV, AZ = 96, 128
    for i in range(64):
        k(f"v_mov_b32 v{AKV + i}, 0")
    k("s_barrier")
    for kk in range(2):
        for j in range(2):
            k(f"ds_read_b64_tr_b16 {vr(16 + kk * 4 + j * 2, 2)}, v{a_w} offset:{(kk * 16 + j * 4) * 64}")
    k("s_waitcnt vmcnt(0) lgkmcnt(0)")
    for b in range(4):
        k(f"v_mfma_f32_32x32x16_bf16 {vr(T, 16)}, {vr(16, 4)}, {vr(KF + 8 * b, 4)}, 0")
        k(f"v_mfma_f32_32x32x16_bf16 {vr(T, 16)}, {vr(20, 4)}, {vr(KF + 8 * b + 4, 4)}, {vr(T, 16)}")
        for i in range(0, 16, 2):
            bf16r2(k, T + i, T + i + 1, TMP)
        phi_softmax(k, T, P, N, TMP)
        for i in range(8):
            k(f"v_cvt_pk_bf16_f32 v{P + i}, v{P + 2 * i}, v{P + 2 * i + 1}")
            k(f"v_cvt_pk_bf16_f32 v{N + i}, v{N + 2 * i}, v{N + 2 * i + 1}")
        for q in range(4):
            k(f"ds_write_b64 v{pw}, {vr(P + 2 * q, 2)} offset:{q * 16}")
            k(f"ds_write_b64 v{pw}, {vr(N + 2 * q, 2)} offset:{64 + q * 16}")
        k("s_waitcnt lgkmcnt(0)")
        for kk in range(2):
            for fb in range(2):
                for j in range(2):
                    k(f"ds_read_b64_tr_b16 {vr(PF + fb * 4 + j * 2, 2)}, v{a_phi} offset:{(kk * 16 + j * 4) * 128 + fb * 64}")
            for j in range(2):
                k(f"ds_read_b64_tr_b16 {vr(VF + j * 2, 2)}, v{a_v} offset:{b * 2048 + (kk * 16 + j * 4) * 64}")
            k("s_waitcnt lgkmcnt(0)")
            for fb in range(2):
                k(f"v_mfma_f32_32x32x16_bf16 {vr(AKV + fb * 16, 16)}, {vr(PF + fb * 4, 4)}, {vr(VF, 4)}, {vr(AKV + fb * 16, 16)}")
                k(f"v_mfma_f32_32x32x16_bf16 {vr(AZ + fb * 16, 16)}, {vr(PF + fb * 4, 4)}, {vr(ones, 4)}, {vr(AZ + fb * 16, 16)}")
    k("s_barrier")
    RED, ZRED = 4096, 4096 + 65536
    ra = 4
    k(f"v_lshlrev_b32 v{ra}, 2, v{l31}")
    k(f"v_lshl_add_u32 v{ra}, v{h}, 9, v{ra}")
    k(f"s_lshl_b32 s{S_['t0']}, s{S_['w']}, 13")
    k(f"v_add_u32 v{ra}, s{S_['t0']}, v{ra}")
    k(f"v_add_u32 v{ra}, {RED}, v{ra}")
    for fb in range(2):
        for v in range(16):
            F = fb * 32 + (v & 3) + 8 * (v >> 2)
            k(f"ds_write_b32 v{ra}, v{AKV + fb * 16 + v} offset:{F * 128}")
    za = 5
    k(f"v_lshlrev_b32 v{za}, 4, v{h}")
    k(f"s_lshl_b32 s{S_['t0']}, s{S_['w']}, 8")
    k(f"v_add_u32 v{za}, s{S_['t0']}, v{za}")
    k(f"v_add_u32 v{za}, {ZRED}, v{za}")
    k(f"v_cmp_eq_u32 vcc, 0, v{l31}")
    k("s_and_saveexec_b64 s[56:57], vcc")
    for fb in range(2):
        for v in range(16):
            F = fb * 32 + (v & 3) + 8 * (v >> 2)
            k(f"ds_write_b32 v{za}, v{AZ + fb * 16 + v} offset:{F * 4}")
    k("s_mov_b64 exec, s[56:57]")
    k("s_waitcnt lgkmcnt(0)")
    k("s_barrier")
    jj, hh, dd, hf = 6, 7, 8, 9
    k(f"v_lshrrev_b32 v{jj}, 7, v0")
    k(f"v_bfe_u32 v{hh}, v0, 6, 1")
    k(f"v_bfe_u32 v{dd}, v0, 1, 5")
    k(f"v_and_b32 v{hf}, 1, v0")
    F0 = 10
    k(f"v_lshlrev_b32 v{F0}, 4, v{jj}")
    k(f"v_lshl_add_u32 v{F0}, v{hf}, 3, v{F0}")
    k(f"v_lshl_add_u32 v{F0}, v{hh}, 2, v{F0}")
    ad = 11
    k(f"v_lshlrev_b32 v{ad}, 7, v{F0}")
    k(f"v_lshl_add_u32 v{ad}, v{dd}, 2, v{ad}")
    k(f"v_add_u32 v{ad}, {RED}, v{ad}")
    for i in range(4):
        k(f"v_mov_b32 v{12 + i}, 0")
    for w in range(8):
        for i in range(4):
            k(f"ds_read_b32 v{16 + i}, v{ad} offset:{i * 128}")
        k(f"v_add_u32 v{ad}, 8192, v{ad}")
        k("s_waitcnt lgkmcnt(0)")
        for i in range(4):
            k(f"v_add_f32 v{12 + i}, v{12 + i}, v{16 + i}")
    so = 22
    k(f"v_lshrrev_b32 v{so}, 6, v0")
    k(f"v_lshlrev_b32 v{so}, 10, v{so}")
    k(f"v_lshl_add_u32 v{so}, v{dd}, 5, v{so}")
    k(f"v_lshl_add_u32 v{so}, v{hf}, 4, v{so}")
    k(f"s_mul_i32 s{S_['t0']}, s{S_['t5']}, {KVP_BYTES}")
    k(f"buffer_store_dwordx4 v[12:15], v{so}, {sr(S_['srdO'], 4)}, s{S_['t0']} offen")
    k("v_cmp_gt_u32 vcc, 64, v0")
    k("s_and_saveexec_b64 s[56:57], vcc")
    Lz = k.newlabel("ksz")
    k(f"s_cbranch_execz {Lz}")
    k("v_lshlrev_b32 v11, 2, v0")
    k(f"v_add_u32 v11, {ZRED}, v11")
    k("v_mov_b32 v12, 0")
    for w in range(8):
        k(f"ds_read_b32 v16, v11 offset:{w * 256}")
        k("s_waitcnt lgkmcnt(0)")
        k("v_add_f32 v12, v12, v16")
    k("v_lshrrev_b32 v13, 4, v0")
    k("v_bfe_u32 v14, v0, 2, 1")
    k("v_lshl_add_u32 v13, v13, 1, v14")
    k("v_lshlrev_b32 v13, 3, v13")
    k("v_bfe_u32 v14, v0, 3, 1")
    k("v_lshl_add_u32 v13, v14, 2, v13")
    k("v_and_b32 v14, 3, v0")
    k("v_add_u32 v13, v13, v14")
    k("v_lshlrev_b32 v13, 2, v13")
    k(f"s_add_u32 s{S_['t0']}, s{S_['t0']}, 8192")
    k(f"buffer_store_dword v12, v13, {sr(S_['srdO'], 4)}, s{S_['t0']} offen")
    k.label(Lz)
    k.label(Lx)
    k("s_endpgm")


def w3_role(k, g, cfg, base):
    S_ = SG
    stamp(k, 0)
    tile_decode(k, 3584 // cfg.BN, base)
    gemm_setup(k, g, cfg, "ws", WS_X1, S * D * 2, "w3", D * 3584 * 2, WS_H3, S * 3584 * 2, 2048, 7168, D // 64)
    gelu_consts(k)
    srd(k, S_['srdX'], S_['ws'], S * 128, WS_ST)
    srd(k, S_['srdY'], S_['ws'], 3584 * 4, WS_CS3)
    stamp(k, 1)
    g.mainloop()
    stamp(k, 2)
    st = {}

    def pre(g, ctx):
        f = ctx['free']
        st['cs'] = f; st['mb'] = f + 32; st['ri'] = f + 34; st['t'] = f + 36; st['ld'] = f + 40
        st['mb2'] = f + 72; st['ri2'] = f + 76; st['gt'] = f + 40
        assert f + 80 <= 168 and f % 2 == 0, f
        o = st['t']
        k(f"v_lshlrev_b32 v{o}, 4, v{ctx['h']}")
        k(f"s_lshl_b32 s{S_['t0']}, s{ctx['col0']}, 2")
        k(f"v_add_u32 v{o}, s{S_['t0']}, v{o}")
        for cb in range(2):
            for q in range(4):
                k(f"buffer_load_dwordx4 {vr(f + (cb * 4 + q) * 4, 4)}, v{o}, {sr(S_['srdY'], 4)}, 0 offen offset:{cb * 128 + q * 32}")
        so = st['t'] + 1
        k(f"v_add_u32 v{so}, s{ctx['row0']}, v{ctx['l31']}")
        k(f"v_lshlrev_b32 v{so}, 7, v{so}")
        for rb in range(cfg.MB):
            ld = st['ld']
            for j in range(8):
                k(f"buffer_load_dwordx4 {vr(ld + 4 * j, 4)}, v{so}, {sr(S_['srdX'], 4)}, 0 offen offset:{j * 16}")
            k("s_waitcnt vmcnt(0)")
            s1, s2 = st['mb'] + rb, st['ri'] + rb
            k(f"v_add_f32 v{s1}, v{ld}, v{ld + 2}")
            k(f"v_add_f32 v{s2}, v{ld + 1}, v{ld + 3}")
            for j in range(2, 16):
                k(f"v_add_f32 v{s1}, v{s1}, v{ld + 2 * j}")
                k(f"v_add_f32 v{s2}, v{s2}, v{ld + 2 * j + 1}")
            k(f"v_mul_f32 v{s1}, {f32hex(1.0 / D)}, v{s1}")
            k(f"v_mul_f32 v{s2}, {f32hex(1.0 / D)}, v{s2}")
            tt = st['t'] + 2
            k(f"v_fma_f32 v{s2}, -v{s1}, v{s1}, v{s2}")
            k(f"v_max_f32 v{s2}, 0, v{s2}")
            bf16r2(k, s1, s2, tt)
            k(f"v_add_f32 v{s2}, {f32hex(1e-5)}, v{s2}")
            bf16r1(k, s2, tt)
            k(f"v_sqrt_f32 v{s2}, v{s2}")
            bf16r1(k, s2, tt)
            k(f"v_rcp_f32 v{s2}, v{s2}")
            k(f"v_mov_b32 v{st['mb2'] + 2 * rb}, v{s1}")
            k(f"v_mov_b32 v{st['mb2'] + 2 * rb + 1}, v{s1}")
            k(f"v_mov_b32 v{st['ri2'] + 2 * rb}, v{s2}")
            k(f"v_mov_b32 v{st['ri2'] + 2 * rb + 1}, v{s2}")
            if rb != cfg.MB - 1:
                k(f"v_add_u32 v{so}, 4096, v{so}")

    def hook(g, ctx, cb, rb, a):
        cs = st['cs'] + cb * 16
        mb2, ri2 = st['mb2'] + 2 * rb, st['ri2'] + 2 * rb
        for i in range(0, 16, 2):
            k(f"v_pk_fma_f32 {vr(a + i, 2)}, {vr(mb2, 2)}, {vr(cs + i, 2)}, {vr(a + i, 2)} neg_lo:[1,0,0] neg_hi:[1,0,0]")
        for i in range(0, 16, 2):
            k(f"v_pk_mul_f32 {vr(a + i, 2)}, {vr(a + i, 2)}, {vr(ri2, 2)}")
        gelu_block(k, a, 16, st['gt'])
    epilogue_lds(g, 7168, hook=hook, pre=pre)
    k("s_waitcnt vmcnt(0)") if os.environ.get("STAMP") else None
    stamp(k, 3)
    k("s_endpgm")


def qside_role(k, base):
    S_ = SG
    Lx = k.newlabel("qsx")
    load_ptr(k, S_['ws'], "ws")
    load_ptr(k, 6, "w_phi")
    k("v_lshrrev_b32 v1, 6, v0")
    k(f"v_readfirstlane_b32 s{S_['w']}, v1")
    k(f"s_cmp_ge_u32 s{S_['w']}, 8")
    k(f"s_cbranch_scc1 {Lx}")
    k(f"s_sub_u32 s{S_['id']}, s2, {base}")
    k("s_waitcnt lgkmcnt(0)")
    srd(k, S_['srdA'], S_['ws'], S * D * 2, WS_QKV)
    srd(k, S_['srdB'], 6, 32 * 32 * 32 * 2)
    srd(k, S_['srdO'], S_['ws'], S * D * 2, WS_O)
    srd(k, S_['srdX'], S_['ws'], 32 * NPART * KVP_BYTES, WS_KV)
    lane = 2
    k(f"v_and_b32 v{lane}, 63, v0")
    k("v_lshlrev_b32 v3, 4, v2")
    Lnw = k.newlabel("nw")
    k(f"s_cmp_lg_u32 s{S_['w']}, 0")
    k(f"s_cbranch_scc1 {Lnw}")
    k(f"s_lshl_b32 s{S_['t0']}, s{S_['id']}, 11")
    k("s_mov_b32 m0, 0")
    k(f"buffer_load_dwordx4 v3, {sr(S_['srdB'], 4)}, s{S_['t0']} offen lds")
    k(f"s_add_u32 s{S_['t0']}, s{S_['t0']}, 1024")
    k("s_mov_b32 m0, 1024")
    k(f"buffer_load_dwordx4 v3, {sr(S_['srdB'], 4)}, s{S_['t0']} offen lds")
    k("s_waitcnt vmcnt(0)")
    k.label(Lnw)
    k("s_barrier")
    a_w = 4
    tr_addr_small(k, lane, a_w, 10, 64)
    for kk in range(2):
        for j in range(2):
            k(f"ds_read_b64_tr_b16 {vr(16 + kk * 4 + j * 2, 2)}, v{a_w} offset:{(kk * 16 + j * 4) * 64}")
    l31, h = 7, 8
    k(f"v_and_b32 v{l31}, 31, v{lane}")
    k(f"v_lshrrev_b32 v{h}, 5, v{lane}")
    koff = 9
    k(f"s_lshl_b32 s{S_['t0']}, s{S_['w']}, 8")
    k(f"v_add_u32 v{koff}, s{S_['t0']}, v{l31}")
    k(f"v_lshlrev_b32 v{koff}, 11, v{koff}")
    k(f"v_lshl_add_u32 v{koff}, v{h}, 4, v{koff}")
    k(f"s_lshl_b32 s{S_['t0']}, s{S_['id']}, 6")
    k(f"v_add_u32 v{koff}, s{S_['t0']}, v{koff}")
    ooff = 10
    k(f"s_lshl_b32 s{S_['t1']}, s{S_['w']}, 8")
    k(f"v_add_u32 v{ooff}, s{S_['t1']}, v{l31}")
    k(f"v_lshlrev_b32 v{ooff}, 11, v{ooff}")
    k(f"v_lshl_add_u32 v{ooff}, v{h}, 4, v{ooff}")
    k(f"v_add_u32 v{ooff}, s{S_['t0']}, v{ooff}")
    KVF, ZF = 24, 40
    x = 11
    k(f"v_lshlrev_b32 v{x}, 10, v{h}")
    k(f"v_lshl_add_u32 v{x}, v{l31}, 5, v{x}")
    k(f"s_mul_i32 s{S_['t0']}, s{S_['id']}, {NPART * KVP_BYTES}")
    LA, LB, LZ = 72, 104, 136
    x2, xz = 12, 13
    k(f"v_add_u32 v{x2}, 4096, v{x}")
    k(f"v_lshlrev_b32 v{xz}, 5, v{h}")
    k(f"v_add_u32 v{xz}, 8192, v{xz}")
    for p in range(NPART):
        dk = LA if p == 0 else LB
        dz = ZF if p == 0 else LZ
        for jj in range(4):
            for j in range(2):
                k(f"buffer_load_dwordx4 {vr(dk + jj * 8 + j * 4, 4)}, v{x if jj < 2 else x2}, {sr(S_['srdX'], 4)}, s{S_['t0']} offen offset:{(jj & 1) * 2048 + j * 16}")
        for jj in range(4):
            for j in range(2):
                k(f"buffer_load_dwordx4 {vr(dz + jj * 8 + j * 4, 4)}, v{xz}, {sr(S_['srdX'], 4)}, s{S_['t0']} offen offset:{jj * 64 + j * 16}")
        if p != NPART - 1:
            k(f"s_add_u32 s{S_['t0']}, s{S_['t0']}, {KVP_BYTES}")
        if p:
            k("s_waitcnt vmcnt(0)")
            for i in range(32):
                k(f"v_add_f32 v{LA + i}, v{LA + i}, v{LB + i}")
                k(f"v_add_f32 v{ZF + i}, v{ZF + i}, v{LZ + i}")
    for i in range(16):
        k(f"v_cvt_pk_bf16_f32 v{KVF + i}, v{LA + 2 * i}, v{LA + 2 * i + 1}")
    for i in range(0, 32, 2):
        bf16r2(k, ZF + i, ZF + i + 1, LA)
    KF, T, P, N, TMP = 72, 80, 96, 112, 128
    NUM = 132
    k(f"s_mov_b32 s{S_['cnt']}, 8")
    Lloop = k.newlabel("qsl")
    k.label(Lloop)
    k(f"buffer_load_dwordx4 {vr(KF, 4)}, v{koff}, {sr(S_['srdA'], 4)}, 0 offen")
    k(f"buffer_load_dwordx4 {vr(KF + 4, 4)}, v{koff}, {sr(S_['srdA'], 4)}, 0 offen offset:32")
    k(f"v_add_u32 v{koff}, {32 * 2048}, v{koff}")
    k("s_waitcnt vmcnt(0) lgkmcnt(0)")
    k(f"v_mfma_f32_32x32x16_bf16 {vr(T, 16)}, {vr(16, 4)}, {vr(KF, 4)}, 0")
    k(f"v_mfma_f32_32x32x16_bf16 {vr(T, 16)}, {vr(20, 4)}, {vr(KF + 4, 4)}, {vr(T, 16)}")
    for i in range(0, 16, 2):
        bf16r2(k, T + i, T + i + 1, TMP)
    phi_softmax(k, T, P, N, TMP)
    for i in range(8):
        k(f"v_cvt_pk_bf16_f32 v{T + i}, v{P + 2 * i}, v{P + 2 * i + 1}")
        k(f"v_cvt_pk_bf16_f32 v{T + 8 + i}, v{N + 2 * i}, v{N + 2 * i + 1}")
    k(f"v_mfma_f32_32x32x16_bf16 {vr(NUM, 16)}, {vr(KVF, 4)}, {vr(T, 4)}, 0")
    for jj in range(1, 4):
        k(f"v_mfma_f32_32x32x16_bf16 {vr(NUM, 16)}, {vr(KVF + 4 * jj, 4)}, {vr(T + 4 * jj, 4)}, {vr(NUM, 16)}")
    den = TMP
    k(f"v_mov_b32 v{den}, 0")
    for i in range(16):
        k(f"v_lshlrev_b32 v{TMP + 1}, 16, v{T + i}")
        k(f"v_fmac_f32 v{den}, v{TMP + 1}, v{ZF + 2 * i}")
        k(f"v_and_b32 v{TMP + 1}, 0xffff0000, v{T + i}")
        k(f"v_fmac_f32 v{den}, v{TMP + 1}, v{ZF + 2 * i + 1}")
    half_reduce32(k, den, TMP + 1, "add")
    bf16r1(k, den, TMP + 1)
    k(f"v_add_f32 v{den}, {f32hex(1e-6)}, v{den}")
    bf16r1(k, den, TMP + 1)
    k(f"v_rcp_f32 v{den}, v{den}")
    for i in range(0, 16, 2):
        bf16r2(k, NUM + i, NUM + i + 1, TMP + 1)
    for i in range(16):
        k(f"v_mul_f32 v{NUM + i}, v{NUM + i}, v{den}")
    for q in range(4):
        k(f"v_cvt_pk_bf16_f32 v{P + 2 * q}, v{NUM + 4 * q}, v{NUM + 4 * q + 1}")
        k(f"v_cvt_pk_bf16_f32 v{P + 2 * q + 1}, v{NUM + 4 * q + 2}, v{NUM + 4 * q + 3}")
    for q in (0, 2):
        k(f"v_permlane32_swap_b32 v{P + 2 * q}, v{P + 2 * q + 2}")
        k(f"v_permlane32_swap_b32 v{P + 2 * q + 1}, v{P + 2 * q + 3}")
    k(f"buffer_store_dwordx4 {vr(P, 4)}, v{ooff}, {sr(S_['srdO'], 4)}, 0 offen")
    k(f"buffer_store_dwordx4 {vr(P + 4, 4)}, v{ooff}, {sr(S_['srdO'], 4)}, 0 offen offset:32")
    k(f"v_add_u32 v{ooff}, {32 * 2048}, v{ooff}")
    k(f"s_sub_u32 s{S_['cnt']}, s{S_['cnt']}, 1")
    k(f"s_cmp_lg_u32 s{S_['cnt']}, 0")
    k(f"s_cbranch_scc1 {Lloop}")
    k.label(Lx)
    k("s_endpgm")


def qside2_role(k, s_head, s_part):
    S_ = SG
    load_ptr(k, S_['ws'], "ws")
    load_ptr(k, 6, "w_phi")
    k("v_lshrrev_b32 v1, 6, v0")
    k(f"v_readfirstlane_b32 s{S_['w']}, v1")
    k("s_waitcnt lgkmcnt(0)")
    srd(k, S_['srdA'], S_['ws'], S * D * 2, WS_QKV)
    srd(k, S_['srdB'], 6, 32 * 32 * 32 * 2)
    srd(k, S_['srdO'], S_['ws'], S * D * 2, WS_O)
    srd(k, S_['srdX'], S_['ws'], 32 * NPART * KVP_BYTES, WS_KV)
    lane = 2
    k(f"v_and_b32 v{lane}, 63, v0")
    k("v_lshlrev_b32 v3, 4, v2")
    KVL = 4096
    Lnw = k.newlabel("nw")
    k(f"s_cmp_lg_u32 s{S_['w']}, 11")
    k(f"s_cbranch_scc1 {Lnw}")
    k(f"s_lshl_b32 s{S_['t0']}, s{s_head}, 11")
    k("s_mov_b32 m0, 0")
    k(f"buffer_load_dwordx4 v3, {sr(S_['srdB'], 4)}, s{S_['t0']} offen lds")
    k(f"s_add_u32 s{S_['t0']}, s{S_['t0']}, 1024")
    k("s_mov_b32 m0, 1024")
    k(f"buffer_load_dwordx4 v3, {sr(S_['srdB'], 4)}, s{S_['t0']} offen lds")
    k("s_waitcnt vmcnt(0)")
    k.label(Lnw)
    Lns = k.newlabel("ns")
    k("v_cmp_gt_u32 vcc, 528, v0")
    k("s_and_saveexec_b64 s[56:57], vcc")
    k(f"s_cbranch_execz {Lns}")
    k("v_lshlrev_b32 v4, 4, v0")
    k(f"s_mul_i32 s{S_['t0']}, s{s_head}, {NPART * KVP_BYTES}")
    for p in range(NPART):
        k(f"buffer_load_dwordx4 {vr(16 + 4 * p, 4)}, v4, {sr(S_['srdX'], 4)}, s{S_['t0']} offen")
        if p != NPART - 1:
            k(f"s_add_u32 s{S_['t0']}, s{S_['t0']}, {KVP_BYTES}")
    k("s_waitcnt vmcnt(0)")
    for st_ in (16, 8, 4):
        for i in range(st_):
            k(f"v_add_f32 v{16 + i}, v{16 + i}, v{16 + st_ + i}")
    k(f"ds_write_b128 v4, v[16:19] offset:{KVL}")
    k.label(Lns)
    k("s_mov_b64 exec, s[56:57]")
    l31, h = 7, 8
    k(f"v_and_b32 v{l31}, 31, v{lane}")
    k(f"v_lshrrev_b32 v{h}, 5, v{lane}")
    k(f"s_mul_i32 s{S_['t2']}, s{s_part}, 22")
    k(f"s_add_u32 s{S_['t3']}, s{S_['t2']}, 22")
    k(f"s_min_u32 s{S_['t3']}, s{S_['t3']}, 64")
    k(f"s_add_u32 s{S_['t2']}, s{S_['t2']}, s{S_['w']}")
    koff, ooff = 9, 10
    k(f"s_lshl_b32 s{S_['t0']}, s{S_['t2']}, 5")
    k(f"v_add_u32 v{koff}, s{S_['t0']}, v{l31}")
    k(f"v_lshlrev_b32 v{koff}, 11, v{koff}")
    k(f"v_lshl_add_u32 v{koff}, v{h}, 4, v{koff}")
    k(f"s_lshl_b32 s{S_['t0']}, s{s_head}, 6")
    k(f"v_add_u32 v{koff}, s{S_['t0']}, v{koff}")
    KF = 72
    k(f"buffer_load_dwordx4 {vr(KF, 4)}, v{koff}, {sr(S_['srdA'], 4)}, 0 offen")
    k(f"buffer_load_dwordx4 {vr(KF + 4, 4)}, v{koff}, {sr(S_['srdA'], 4)}, 0 offen offset:32")
    k("s_waitcnt lgkmcnt(0)")
    k("s_barrier")
    a_w = 4
    tr_addr_small(k, lane, a_w, 11, 64)
    for kk in range(2):
        for j in range(2):
            k(f"ds_read_b64_tr_b16 {vr(16 + kk * 4 + j * 2, 2)}, v{a_w} offset:{(kk * 16 + j * 4) * 64}")
    KVF, ZF, LA = 24, 40, 112
    x = 11
    k(f"v_lshlrev_b32 v{x}, 10, v{h}")
    k(f"v_lshl_add_u32 v{x}, v{l31}, 5, v{x}")
    for jj in range(4):
        for j in range(2):
            k(f"ds_read_b128 {vr(LA + jj * 8 + j * 4, 4)}, v{x} offset:{KVL + jj * 2048 + j * 16}")
    k(f"v_lshlrev_b32 v{x}, 5, v{h}")
    for jj in range(4):
        for j in range(2):
            k(f"ds_read_b128 {vr(ZF + jj * 8 + j * 4, 4)}, v{x} offset:{KVL + 8192 + jj * 64 + j * 16}")
    k("s_waitcnt lgkmcnt(0)")
    for i in range(16):
        k(f"v_cvt_pk_bf16_f32 v{KVF + i}, v{LA + 2 * i}, v{LA + 2 * i + 1}")
    for i in range(0, 32, 2):
        bf16r2(k, ZF + i, ZF + i + 1, LA)
    k(f"s_mov_b32 s58, {f32hex(LOG2E)}")
    k(f"s_mov_b32 s59, {f32hex(LOG2E)}")
    T, PN, R, TMP, NUM = 80, 96, 112, 144, 152
    Lloop = k.newlabel("qsl"); Lx = k.newlabel("qsx")
    k.label(Lloop)
    k(f"s_cmp_ge_u32 s{S_['t2']}, s{S_['t3']}")
    k(f"s_cbranch_scc1 {Lx}")
    k("s_waitcnt vmcnt(0)")
    k(f"v_mfma_f32_32x32x16_bf16 {vr(T, 16)}, {vr(16, 4)}, {vr(KF, 4)}, 0")
    k(f"v_mfma_f32_32x32x16_bf16 {vr(T, 16)}, {vr(20, 4)}, {vr(KF + 4, 4)}, {vr(T, 16)}")
    k(f"v_add_u32 v{ooff}, {12 * 32 * 2048}, v{koff}")
    k(f"buffer_load_dwordx4 {vr(KF, 4)}, v{ooff}, {sr(S_['srdA'], 4)}, 0 offen")
    k(f"buffer_load_dwordx4 {vr(KF + 4, 4)}, v{ooff}, {sr(S_['srdA'], 4)}, 0 offen offset:32")
    for i in range(0, 16, 2):
        bf16r2(k, T + i, T + i + 1, TMP)
    phi_softmax2(k, T, PN, PN + 8, R, TMP)
    k(f"v_mfma_f32_32x32x16_bf16 {vr(NUM, 16)}, {vr(KVF, 4)}, {vr(PN, 4)}, 0")
    for jj in range(1, 4):
        k(f"v_mfma_f32_32x32x16_bf16 {vr(NUM, 16)}, {vr(KVF + 4 * jj, 4)}, {vr(PN + 4 * jj, 4)}, {vr(NUM, 16)}")
    den = TMP
    k(f"v_mov_b32 v{den}, 0")
    for i in range(16):
        k(f"v_lshlrev_b32 v{TMP + 1}, 16, v{PN + i}")
        k(f"v_fmac_f32 v{den}, v{TMP + 1}, v{ZF + 2 * i}")
        k(f"v_and_b32 v{TMP + 1}, 0xffff0000, v{PN + i}")
        k(f"v_fmac_f32 v{den}, v{TMP + 1}, v{ZF + 2 * i + 1}")
    half_reduce32(k, den, TMP + 1, "add")
    bf16r1(k, den, TMP + 1)
    k(f"v_add_f32 v{den}, {f32hex(1e-6)}, v{den}")
    bf16r1(k, den, TMP + 1)
    k(f"v_rcp_f32 v{den}, v{den}")
    for i in range(0, 16, 2):
        bf16r2(k, NUM + i, NUM + i + 1, TMP + 1)
    for i in range(16):
        k(f"v_mul_f32 v{NUM + i}, v{NUM + i}, v{den}")
    P = R
    for q in range(4):
        k(f"v_cvt_pk_bf16_f32 v{P + 2 * q}, v{NUM + 4 * q}, v{NUM + 4 * q + 1}")
        k(f"v_cvt_pk_bf16_f32 v{P + 2 * q + 1}, v{NUM + 4 * q + 2}, v{NUM + 4 * q + 3}")
    for q in (0, 2):
        k(f"v_permlane32_swap_b32 v{P + 2 * q}, v{P + 2 * q + 2}")
        k(f"v_permlane32_swap_b32 v{P + 2 * q + 1}, v{P + 2 * q + 3}")
    k(f"buffer_store_dwordx4 {vr(P, 4)}, v{koff}, {sr(S_['srdO'], 4)}, 0 offen")
    k(f"buffer_store_dwordx4 {vr(P + 4, 4)}, v{koff}, {sr(S_['srdO'], 4)}, 0 offen offset:32")
    k(f"v_mov_b32 v{koff}, v{ooff}")
    k(f"s_add_u32 s{S_['t2']}, s{S_['t2']}, 12")
    k(f"s_branch {Lloop}")
    k.label(Lx)
    k("s_endpgm")


def gen_l2():
    cfg = GemmCfg(2, 2, 2, 2, 3)
    k = Kernel("l2_kernel")
    S_ = SG
    g = GemmGen(k, cfg, S_, fsets=2)
    Lend = k.newlabel("end"); Lcs = k.newlabel("cs"); Lqs = k.newlabel("qs")
    k(f"s_cmp_ge_u32 s2, {128 + 96 + 28}")
    k(f"s_cbranch_scc1 {Lend}")
    xcd_decode(k)
    k(f"s_cmp_ge_u32 s{S_['jj']}, 28")
    k(f"s_cbranch_scc1 {Lcs}")
    k(f"s_cmp_ge_u32 s{S_['jj']}, 16")
    k(f"s_cbranch_scc1 {Lqs}")
    w2_role(k, g, cfg, 0)
    k.label(Lqs)
    k(f"s_sub_u32 s{S_['id']}, s2, 128")
    k(f"s_lshr_b32 s{S_['t5']}, s{S_['id']}, 5")
    k(f"s_and_b32 s{S_['id']}, s{S_['id']}, 31")
    qside2_role(k, S_['id'], S_['t5'])
    k.label(Lcs)
    cs3_role(k, 28)
    k.label(Lend)
    k("s_endpgm")
    return k, 168, 128 + 96 + 28, 147456, 768


def pf_role(k, name, nbytes, nwg, s_idx):
    S_ = SG
    per = (nbytes + nwg - 1) // nwg
    rounds = (per + 12287) // 12288
    load_ptr(k, 6, name)
    k("s_waitcnt lgkmcnt(0)")
    srd(k, S_['srdB'], 6, nbytes)
    k(f"s_mul_i32 s{S_['t0']}, s{s_idx}, {per}")
    k("v_lshlrev_b32 v1, 4, v0")
    for r in range(rounds):
        k(f"buffer_load_dwordx4 {vr(4 + 4 * (r % 8), 4)}, v1, {sr(S_['srdB'], 4)}, s{S_['t0']} offen")
        k(f"s_add_u32 s{S_['t0']}, s{S_['t0']}, 12288")
        if r % 8 == 7:
            k("s_waitcnt vmcnt(4)")
    k("s_waitcnt vmcnt(0)")


def gen_l3():
    cfg = GemmCfg()
    k = Kernel("l3_kernel")
    g = GemmGen(k, cfg, SG)
    n3 = (S // cfg.BM) * (3584 // cfg.BN)
    Lend = k.newlabel("end"); Lpf = k.newlabel("pf")
    k(f"s_cmp_ge_u32 s2, {n3 + 32}")
    k(f"s_cbranch_scc1 {Lend}")
    k(f"s_cmp_ge_u32 s2, {n3}")
    k(f"s_cbranch_scc1 {Lpf}")
    w3_role(k, g, cfg, 0)
    k.label(Lpf)
    k(f"s_sub_u32 s{SG['id']}, s2, {n3}")
    pf_role(k, "w4", 3584 * D * 2, 32, SG['id'])
    pf_role(k, "wo", D * D * 2, 32, SG['id'])
    k.label(Lend)
    k("s_endpgm")
    return k, 168, n3 + 32, cfg.lds, cfg.nthreads


def gen_l4():
    cfg = GemmCfg(*[int(x) for x in os.environ.get('CFG4', '4,1,1,2,6').split(',')])
    k = Kernel("l4_kernel")
    S_ = SG
    g = GemmGen(k, cfg, S_, fsets=2)
    n4 = (S // cfg.BM) * (1024 // cfg.BN)
    Lend = k.newlabel("end")
    k(f"s_cmp_ge_u32 s2, {n4}")
    k(f"s_cbranch_scc1 {Lend}")
    xcd_decode(k)
    xcd_tile(k, 1, (S // cfg.BM) // 4, (1024 // cfg.BN) // 2)
    load_ptr(k, S_['ws'], "ws")
    load_ptr(k, 4, "wo")
    load_ptr(k, 6, "w4")
    load_ptr(k, 58, "out")
    k("s_waitcnt lgkmcnt(0)")
    srd(k, S_['srdA'], S_['ws'], S * D * 2, WS_O)
    srd(k, S_['srdB'], 4, D * D * 2)
    srd(k, S_['srdO'], 58, S * D * 2)
    k(f"s_mov_b32 s{S_['koffA']}, 0")
    k(f"s_mov_b32 s{S_['koffB']}, 0")
    k(f"s_mov_b32 s{S_['cnt']}, {D // 64}")
    g.prologue_common()
    g.loader_begin()
    g.loader_segment(2048, 2048, S_['tm'], S_['tn'], std_adv(2048))
    k("s_barrier")
    srd(k, S_['srdA'], S_['ws'], S * 3584 * 2, WS_H3)
    srd(k, S_['srdB'], 6, 3584 * D * 2)
    k(f"s_mov_b32 s{S_['koffA']}, 0")
    k(f"s_mov_b32 s{S_['koffB']}, 0")
    k(f"s_mov_b32 s{S_['cnt']}, {3584 // 64}")
    g.loader_segment(7168, 2048, S_['tm'], S_['tn'], std_adv(2048))
    g.loader_end()
    g.prologue_addr(2048, 2048, S_['tm'], S_['tn'])
    g.zero_acc()
    g.mainloop()
    k("s_barrier")
    nacc = cfg.MB * cfg.NB * 16
    AP = g.tmp
    for i in range(nacc // 2):
        k(f"v_cvt_pk_bf16_f32 v{AP + i}, v{g.acc + 2 * i}, v{g.acc + 2 * i + 1}")
    g.zero_acc()
    k(f"s_mov_b32 s{S_['cnt']}, {3584 // 64}")
    g.mainloop()
    srd(k, S_['srdX'], S_['ws'], S * D * 2, WS_X1)
    srd(k, S_['srdY'], S_['ws'], S * 4, WS_G)
    st = {}

    def pre(g, ctx):
        f = AP + nacc // 2
        st['xoff'] = f; st['xr'] = f + 2; st['g'] = f + 10; st['t'] = f + 12; st['og'] = f + 14
        k(f"v_add_u32 v{f}, s{ctx['row0']}, v{ctx['l31']}")
        k(f"v_lshlrev_b32 v{f + 1}, 2, v{f}")
        k(f"v_lshlrev_b32 v{f}, 11, v{f}")
        k(f"v_lshl_add_u32 v{f}, v{ctx['h']}, 3, v{f}")
        k(f"s_lshl_b32 s{S_['t0']}, s{ctx['col0']}, 1")
        k(f"v_add_u32 v{f}, s{S_['t0']}, v{f}")
        k(f"s_mov_b32 s{S_['t1']}, {32 * 2048}")
        for rb in range(cfg.MB):
            k(f"buffer_load_dword v{st['g'] + rb}, v{f + 1}, {sr(S_['srdY'], 4)}, 0 offen offset:{rb * 128}")

    def hook(g, ctx, cb, rb, a):
        xr, t = st['xr'], st['t']
        soff = "0" if rb == 0 else f"s{S_['t1']}"
        for q in range(4):
            k(f"buffer_load_dwordx2 {vr(xr + 2 * q, 2)}, v{st['xoff']}, {sr(S_['srdX'], 4)}, {soff} offen offset:{cb * 64 + q * 16}")
        for i in range(0, 16, 2):
            bf16r2(k, a + i, a + i + 1, t)
        k("s_waitcnt vmcnt(0)")
        gq = st['g'] + rb
        og = st['og']
        k(f"v_sub_f32 v{og}, 1.0, v{gq}")
        bf16r1(k, og, t)
        for q in range(4):
            for j in range(2):
                i = a + 4 * q + 2 * j
                k(f"v_lshlrev_b32 v{t}, 16, v{xr + 2 * q + j}")
                k(f"v_add_f32 v{i}, v{i}, v{t}")
                k(f"v_and_b32 v{t}, 0xffff0000, v{xr + 2 * q + j}")
                k(f"v_add_f32 v{i + 1}, v{i + 1}, v{t}")
        for i in range(0, 16, 2):
            bf16r2(k, a + i, a + i + 1, t)
        for i in range(16):
            k(f"v_mul_f32 v{a + i}, v{a + i}, v{og}")
        for i in range(0, 16, 2):
            bf16r2(k, a + i, a + i + 1, t)
        ap = AP + (a - g.acc) // 2
        for i in range(8):
            k(f"v_lshlrev_b32 v{t}, 16, v{ap + i}")
            k(f"v_mul_f32 v{t}, v{t}, v{gq}")
            k(f"v_and_b32 v{t + 1}, 0xffff0000, v{ap + i}")
            k(f"v_mul_f32 v{t + 1}, v{t + 1}, v{gq}")
            bf16r2(k, t, t + 1, og + 1)
            k(f"v_add_f32 v{a + 2 * i}, v{a + 2 * i}, v{t}")
            k(f"v_add_f32 v{a + 2 * i + 1}, v{a + 2 * i + 1}, v{t + 1}")
    epilogue_lds(g, 2048, hook=hook, pre=pre, ebase=g.fx[0])
    k.label(Lend)
    k("s_endpgm")
    return k, 168, n4, cfg.lds, 768


def prefetch_seg(k, cfg, lda, ldb, nsteps, depth, first, adv_b=None):
    S_ = SG
    k(f"s_sub_u32 s{S_['t2']}, s{S_['w']}, {cfg.nw + cfg.NL}")
    k("v_and_b32 v4, 63, v0")
    La = k.newlabel("pfa"); Lgo = k.newlabel("pfg")
    k(f"s_cmp_lg_u32 s{S_['t2']}, 0")
    k(f"s_cbranch_scc1 {La}")
    k(f"s_mul_i32 s{S_['t0']}, s{S_['tm']}, {cfg.BM}")
    k(f"v_add_u32 v5, s{S_['t0']}, v4")
    k(f"s_mov_b32 s{S_['t1']}, {lda}")
    k(f"v_mul_lo_u32 v5, v5, s{S_['t1']}")
    k(f"v_add_u32 v6, {64 * lda}, v5")
    k(f"s_mov_b32 s{S_['t3']}, 128")
    k(f"s_mov_b32 s{S_['m0a']}, s{S_['koffA']}")
    k(f"s_branch {Lgo}")
    k.label(La)
    k(f"s_mov_b32 s{S_['t1']}, {ldb}")
    k(f"v_mul_lo_u32 v5, v4, s{S_['t1']}")
    k(f"s_mul_i32 s{S_['t0']}, s{S_['tn']}, {cfg.BN * 2}")
    k(f"v_add_u32 v5, s{S_['t0']}, v5")
    k(f"v_add_u32 v6, 128, v5")
    k(f"s_mov_b32 s{S_['t3']}, {64 * ldb}")
    k(f"s_mov_b32 s{S_['m0a']}, s{S_['koffB']}")
    for i in range(4):
        k(f"s_mov_b32 s{S_['srdA'] + i}, s{S_['srdB'] + i}")
    k.label(Lgo)
    k(f"s_mul_i32 s{S_['t0']}, s{S_['t3']}, {depth}")
    k(f"s_add_u32 s{S_['m0a']}, s{S_['m0a']}, s{S_['t0']}")
    k(f"s_mov_b32 s{S_['cnt']}, {nsteps}")
    Ll = k.newlabel("pfl")
    k.label(Ll)
    k("s_barrier")
    k(f"buffer_load_dword v7, v5, {sr(S_['srdA'], 4)}, s{S_['m0a']} offen")
    k(f"buffer_load_dword v8, v6, {sr(S_['srdA'], 4)}, s{S_['m0a']} offen")
    k("s_waitcnt vmcnt(24)")
    k(f"s_add_u32 s{S_['m0a']}, s{S_['m0a']}, s{S_['t3']}")
    k(f"s_sub_u32 s{S_['cnt']}, s{S_['cnt']}, 1")
    k(f"s_cmp_lg_u32 s{S_['cnt']}, 0")
    k(f"s_cbranch_scc1 {Ll}")


def gen_l4b():
    cfg = GemmCfg(*[int(x) for x in os.environ.get('CFG4B', '4,2,1,2,4').split(',')])
    k = Kernel("l4_kernel")
    S_ = SG
    g = GemmGen(k, cfg, S_, fsets=2)
    N0 = int(os.environ.get("N0", "19"))
    PFD = int(os.environ.get('PF', '0'))
    Lend = k.newlabel("end")
    k("s_cmp_ge_u32 s2, 256")
    k(f"s_cbranch_scc1 {Lend}")
    stamp(k, 0)
    xcd_decode(k)
    HF = S_['t6']
    k(f"s_lshr_b32 s{HF}, s{S_['jj']}, 4")
    k(f"s_and_b32 s{S_['t0']}, s{S_['jj']}, 15")
    k(f"s_lshr_b32 s{S_['tm']}, s{S_['xx']}, 1")
    k(f"s_lshl_b32 s{S_['tm']}, s{S_['tm']}, 2")
    k(f"s_lshr_b32 s{S_['t1']}, s{S_['t0']}, 2")
    k(f"s_add_u32 s{S_['tm']}, s{S_['tm']}, s{S_['t1']}")
    k(f"s_and_b32 s{S_['tn']}, s{S_['xx']}, 1")
    k(f"s_lshl_b32 s{S_['tn']}, s{S_['tn']}, 2")
    k(f"s_and_b32 s{S_['t1']}, s{S_['t0']}, 3")
    k(f"s_add_u32 s{S_['tn']}, s{S_['tn']}, s{S_['t1']}")
    TILE = 62
    k(f"s_lshl_b32 s{TILE}, s{S_['tm']}, 3")
    k(f"s_add_u32 s{TILE}, s{TILE}, s{S_['tn']}")
    load_ptr(k, S_['ws'], "ws")
    load_ptr(k, 4, "wo")
    load_ptr(k, 6, "w4")
    load_ptr(k, 58, "out")
    k("s_waitcnt lgkmcnt(0)")
    srd(k, S_['srdO'], 58, S * D * 2)
    g.prologue_common()
    Lh1 = k.newlabel("h1")
    k(f"s_cmp_lg_u32 s{HF}, 0")
    k(f"s_cbranch_scc1 {Lh1}")
    srd(k, S_['srdA'], S_['ws'], S * D * 2, WS_O)
    srd(k, S_['srdB'], 4, D * D * 2)
    k(f"s_mov_b32 s{S_['koffA']}, 0")
    k(f"s_mov_b32 s{S_['koffB']}, 0")
    k(f"s_mov_b32 s{S_['cnt']}, {D // 64}")

    def pf0():
        prefetch_seg(k, cfg, 2048, 2048, D // 64, PFD, True)
        k("s_barrier")
        srd(k, S_['srdA'], S_['ws'], S * 3584 * 2, WS_H3)
        srd(k, S_['srdB'], 6, 3584 * D * 2)
        k(f"s_mov_b32 s{S_['koffA']}, 0")
        k(f"s_mov_b32 s{S_['koffB']}, 0")
        prefetch_seg(k, cfg, 7168, 2048, N0, PFD, True)
    g.loader_begin(extra=pf0 if PFD else None)
    g.loader_segment(2048, 2048, S_['tm'], S_['tn'], std_adv(2048))
    k("s_barrier")
    srd(k, S_['srdA'], S_['ws'], S * 3584 * 2, WS_H3)
    srd(k, S_['srdB'], 6, 3584 * D * 2)
    k(f"s_mov_b32 s{S_['koffA']}, 0")
    k(f"s_mov_b32 s{S_['koffB']}, 0")
    k(f"s_mov_b32 s{S_['cnt']}, {N0}")
    g.loader_segment(7168, 2048, S_['tm'], S_['tn'], std_adv(2048))
    g.loader_end()
    g.prologue_addr(2048, 2048, S_['tm'], S_['tn'])
    g.zero_acc()
    stamp(k, 1)
    g.mainloop()
    k("s_barrier")
    nacc = cfg.MB * cfg.NB * 16
    AP = g.tmp
    for i in range(nacc // 2):
        k(f"v_cvt_pk_bf16_f32 v{AP + i}, v{g.acc + 2 * i}, v{g.acc + 2 * i + 1}")
    g.zero_acc()
    k(f"s_mov_b32 s{S_['cnt']}, {N0}")
    g.mainloop()
    Ljoin = k.newlabel("join")
    k(f"s_branch {Ljoin}")
    k.label(Lh1)
    srd(k, S_['srdA'], S_['ws'], S * 3584 * 2, WS_H3)
    srd(k, S_['srdB'], 6, 3584 * D * 2)
    k(f"s_mov_b32 s{S_['koffA']}, {N0 * 128}")
    k(f"s_mov_b32 s{S_['koffB']}, {N0 * 64 * 2048}")
    k(f"s_mov_b32 s{S_['cnt']}, {56 - N0}")
    g.loader_begin(extra=(lambda: prefetch_seg(k, cfg, 7168, 2048, 56 - N0, PFD, True)) if PFD else None)
    g.loader_segment(7168, 2048, S_['tm'], S_['tn'], std_adv(2048))
    g.loader_end()
    g.prologue_addr(2048, 2048, S_['tm'], S_['tn'])
    g.zero_acc()
    g.mainloop()
    for i in range(nacc // 2):
        k(f"v_mov_b32 v{AP + i}, 0")
    k.label(Ljoin)
    stamp(k, 2)
    srd(k, S_['srdX'], S_['ws'], S * D * 2, WS_X1)
    srd(k, S_['srdY'], S_['ws'], S * 4, WS_G)
    srd(k, S_['srdZ'], S_['ws'], 16384 + (WS_PART - WS_FLAG) + 128 * 65536, WS_FLAG)
    f = AP + 32
    gq, og, t = f, f + 2, f + 4
    k(f"v_and_b32 v{t}, 31, v{g.vtid}")
    k(f"s_mul_i32 s{S_['t0']}, s{S_['tm']}, {cfg.BM}")
    k(f"s_mul_i32 s{S_['t1']}, s{S_['wm']}, {cfg.MB * 32}")
    k(f"s_add_u32 s{S_['t0']}, s{S_['t0']}, s{S_['t1']}")
    k(f"v_add_u32 v{t}, s{S_['t0']}, v{t}")
    k(f"v_lshlrev_b32 v{t}, 2, v{t}")
    for rb in range(cfg.MB):
        k(f"buffer_load_dword v{gq + rb}, v{t}, {sr(S_['srdY'], 4)}, 0 offen offset:{rb * 128}")
    XO = f + 8
    XR = f + 10
    k(f"v_and_b32 v{XO}, 31, v{g.vtid}")
    k(f"v_add_u32 v{XO}, s{S_['t0']}, v{XO}")
    k(f"v_lshlrev_b32 v{XO}, 11, v{XO}")
    k(f"v_bfe_u32 v{XO + 1}, v{g.vtid}, 5, 1")
    k(f"v_lshl_add_u32 v{XO}, v{XO + 1}, 3, v{XO}")
    k(f"s_mul_i32 s{S_['t1']}, s{S_['tn']}, {cfg.BN}")
    k(f"s_mul_i32 s{S_['t2']}, s{S_['wn']}, {cfg.NB * 32}")
    k(f"s_add_u32 s{S_['t1']}, s{S_['t1']}, s{S_['t2']}")
    k(f"s_lshl_b32 s{S_['t1']}, s{S_['t1']}, 1")
    k(f"v_add_u32 v{XO}, s{S_['t1']}, v{XO}")
    for rb in range(cfg.MB):
        for cb in range(cfg.NB):
            for q in range(4):
                k(f"buffer_load_dwordx2 {vr(XR + ((cb * cfg.MB + rb) * 4 + q) * 2, 2)}, v{XO}, {sr(S_['srdX'], 4)}, 0 offen offset:{cb * 64 + q * 16}")
        if rb != cfg.MB - 1:
            k(f"v_add_u32 v{XO}, {32 * 2048}, v{XO}")
    assert XR + nacc // 2 <= 168
    Lna = k.newlabel("na")
    k(f"s_cmp_lg_u32 s{S_['w']}, 0")
    k(f"s_cbranch_scc1 {Lna}")
    k(f"v_mov_b32 v{t + 1}, 1")
    k(f"v_mov_b32 v{t + 2}, 0")
    k(f"s_lshl_b32 s{S_['t0']}, s{TILE}, 6")
    k("s_mov_b64 s[56:57], exec")
    k("s_mov_b64 exec, 1")
    k(f"buffer_atomic_add v{t + 1}, v{t + 2}, {sr(S_['srdZ'], 4)}, s{S_['t0']} offen sc0 sc1")
    k("s_waitcnt vmcnt(0)")
    k(f"v_mov_b32 v{t + 2}, {cfg.lds}")
    k(f"ds_write_b32 v{t + 2}, v{t + 1} offset:0")
    k("s_mov_b64 exec, s[56:57]")
    k.label(Lna)
    k("s_waitcnt vmcnt(0)")
    for rb in range(cfg.MB):
        k(f"v_sub_f32 v{og + rb}, 1.0, v{gq + rb}")
        bf16r1(k, og + rb, t + 3)
    for cb in range(cfg.NB):
        for rb in range(cfg.MB):
            a = g.accr(cb, rb)
            ap = AP + (a - g.acc) // 2
            for i in range(8):
                k(f"v_lshlrev_b32 v{t}, 16, v{ap + i}")
                k(f"v_and_b32 v{t + 1}, 0xffff0000, v{ap + i}")
                k(f"v_mul_f32 v{a + 2 * i}, v{a + 2 * i}, v{og + rb}")
                k(f"v_mul_f32 v{a + 2 * i + 1}, v{a + 2 * i + 1}, v{og + rb}")
                k(f"v_fmac_f32 v{a + 2 * i}, v{t}, v{gq + rb}")
                k(f"v_fmac_f32 v{a + 2 * i + 1}, v{t + 1}, v{gq + rb}")
    k("s_waitcnt lgkmcnt(0)")
    k("s_barrier")
    k(f"v_mov_b32 v{t}, {cfg.lds}")
    k(f"ds_read_b32 v{t + 1}, v{t} offset:0")
    k("s_waitcnt lgkmcnt(0)")
    k(f"v_readfirstlane_b32 s{S_['t2']}, v{t + 1}")
    stamp(k, 3)
    Lfin = k.newlabel("fin")
    if 'noex' in os.environ.get('EXP4', ''):
        k(f"s_branch {Lfin}")
    pa = t + 2
    k(f"v_and_b32 v{pa}, 63, v{g.vtid}")
    k(f"v_lshlrev_b32 v{pa}, 4, v{pa}")
    k(f"s_lshl_b32 s{S_['t0']}, s{TILE}, 16")
    k(f"s_mul_i32 s{S_['t1']}, s{S_['w']}, {nacc * 256}")
    k(f"s_add_u32 s{S_['t0']}, s{S_['t0']}, s{S_['t1']}")
    k(f"s_add_u32 s{S_['t0']}, s{S_['t0']}, {WS_PART - WS_FLAG}")
    Lsec = k.newlabel("sec")
    k(f"s_cmp_lg_u32 s{S_['t2']}, 0")
    k(f"s_cbranch_scc1 {Lsec}")
    for j in range(nacc // 4):
        if j % 4 == 0 and j:
            k(f"s_add_u32 s{S_['t0']}, s{S_['t0']}, 4096")
        k(f"buffer_store_dwordx4 {vr(g.acc + 4 * j, 4)}, v{pa}, {sr(S_['srdZ'], 4)}, s{S_['t0']} offen offset:{(j % 4) * 1024} sc0 sc1")
    k("s_waitcnt vmcnt(0)")
    k("s_barrier")
    k(f"s_cmp_lg_u32 s{S_['w']}, 0")
    k(f"s_cbranch_scc1 {Lend}")
    k(f"v_mov_b32 v{t + 1}, 1")
    k(f"v_mov_b32 v{t}, 0")
    k(f"s_lshl_b32 s{S_['t0']}, s{TILE}, 6")
    k(f"s_add_u32 s{S_['t0']}, s{S_['t0']}, 8192")
    k("s_mov_b64 exec, 1")
    k(f"buffer_atomic_add v{t + 1}, v{t}, {sr(S_['srdZ'], 4)}, s{S_['t0']} offen sc1")
    k("s_endpgm")
    k.label(Lsec)
    k(f"s_lshl_b32 s{S_['t1']}, s{TILE}, 6")
    k(f"s_add_u32 s{S_['t1']}, s{S_['t1']}, 8192")
    k(f"v_mov_b32 v{t}, 0")
    Lspin = k.newlabel("spin"); Lgo = k.newlabel("go")
    k.label(Lspin)
    k(f"buffer_load_dword v{t + 1}, v{t}, {sr(S_['srdZ'], 4)}, s{S_['t1']} offen sc0 sc1")
    k("s_waitcnt vmcnt(0)")
    k(f"v_readfirstlane_b32 s{S_['t2']}, v{t + 1}")
    k(f"s_cmp_lg_u32 s{S_['t2']}, 0")
    k(f"s_cbranch_scc1 {Lgo}")
    k("s_sleep 4")
    k(f"s_branch {Lspin}")
    k.label(Lgo)
    PB = g.fx[0] if False else None
    for b in range(nacc // 32):
        for j in range(8):
            jj = b * 8 + j
            if jj % 4 == 0 and jj:
                k(f"s_add_u32 s{S_['t0']}, s{S_['t0']}, 4096")
            k(f"buffer_load_dwordx4 {vr(AP + 4 * j, 4)}, v{pa}, {sr(S_['srdZ'], 4)}, s{S_['t0']} offen offset:{(jj % 4) * 1024} sc0 sc1")
        for j in range(8):
            k(f"s_waitcnt vmcnt({7 - j})")
            for i in range(4):
                r = g.acc + 32 * b + 4 * j + i
                k(f"v_add_f32 v{r}, v{r}, v{AP + 4 * j + i}")
    k.label(Lfin)
    stamp(k, 4)
    st = {}

    def hook(g, ctx, cb, rb, a):
        tt = AP
        xr = XR + (cb * cfg.MB + rb) * 8
        for q in range(4):
            for j in range(2):
                i = a + 4 * q + 2 * j
                k(f"v_lshlrev_b32 v{tt}, 16, v{xr + 2 * q + j}")
                k(f"v_fmac_f32 v{i}, v{tt}, v{og + rb}")
                k(f"v_and_b32 v{tt}, 0xffff0000, v{xr + 2 * q + j}")
                k(f"v_fmac_f32 v{i + 1}, v{tt}, v{og + rb}")
    pre = None
    epilogue_lds(g, 2048, hook=hook, pre=pre, ebase=g.fx[0])
    k("s_waitcnt vmcnt(0)") if os.environ.get("STAMP") else None
    stamp(k, 5)
    k.label(Lend)
    k("s_endpgm")
    assert f + 8 <= 168, f
    return k, (128 if PFD else 168), 256, 147456, (896 if PFD else 768)


def all_kernels():
    l4 = gen_l4b() if os.environ.get("L4B", "1") == "1" else gen_l4()
    ks = [gen.gen_l0(), gen_l1(), gen_l2(), gen_l3(), l4]
    n = int(os.environ.get("NLAUNCH", "9"))
    return ks[:n]
```

```python
import sys, os
sys.path.insert(0, os.path.dirname(os.path.abspath(__file__)))
from asmdsl import Kernel
from gemm import GemmCfg, GemmGen, vr, sr
from common import *

NAME = "gated_mix__linear_kernel_hedgehog__mixer_s_mlp__prompt"

HEADER = """; Kernarg layout for this problem (104 bytes, ptrs only, base s[0:1]):
"""
KA = dict(A_x=0, wqkv=8, w_phi=16, wo=24, B_x=32, w1=40, w2=48, w3=56, w4=64, gate_w=72, out=80, dbg=88, ws=96)

SG = dict(srdA=8, srdB=12, srdO=16, srdX=20, w=24, wm=25, wn=26, m0a=27, m0b=28, t0=29, t1=30,
          koffA=31, koffB=32, cnt=33, tm=34, tn=35, t2=36, t3=37, gc1=38, gc2=39, ws=40, srdY=44, srdZ=48,
          id=52, t4=53, t5=54, t6=55, xx=70, jj=71)


def kernel_text(k, vgprs, sgprs=102):
    body = k.finish()
    out = [".text", f".globl {k.name}", ".p2align 8", f".type {k.name},@function", f"{k.name}:"]
    out += ["    " + l if not l.endswith(":") else l for l in body]
    vg = (vgprs + 7) // 8 * 8
    assert vg <= 256, vg
    desc = f""".section .rodata,"a"
.p2align 6
.amdhsa_kernel {k.name}
  .amdhsa_next_free_vgpr {vg}
  .amdhsa_next_free_sgpr {sgprs}
  .amdhsa_accum_offset {vg}
  .amdhsa_group_segment_fixed_size 0
  .amdhsa_kernarg_size 104
  .amdhsa_user_sgpr_count 2
  .amdhsa_user_sgpr_kernarg_segment_ptr 1
  .amdhsa_system_sgpr_workgroup_id_x 1
.end_amdhsa_kernel"""
    return "\n".join(out), desc


def load_ptr(k, dst, name):
    k(f"s_load_dwordx2 s[{dst}:{dst + 1}], s[0:1], {KA[name]}")


def stamp(k, idx):
    wg = os.environ.get("STAMP", "")
    if not wg:
        return
    L = k.newlabel("stp")
    k(f"s_cmp_lg_u32 s2, {int(wg)}")
    k(f"s_cbranch_scc1 {L}")
    k("s_load_dwordx2 s[64:65], s[0:1], 88")
    k("s_memrealtime s[66:67]")
    k("s_waitcnt lgkmcnt(0)")
    k("s_and_b32 s65, s65, 0xffff")
    k("s_mov_b32 s[66:67], s[66:67]") if False else None
    k("s_mov_b32 s68, s66")
    k("s_mov_b32 s66, 256")
    k("s_mov_b32 s67, 0x00020000")
    k("v_mov_b32 v166, s68")
    k("v_mov_b32 v167, 0")
    k("s_mov_b64 s[72:73], exec")
    k("s_mov_b64 exec, 1")
    k(f"buffer_store_dword v166, v167, s[64:67], 0 offen offset:{idx * 4}")
    k("s_mov_b64 exec, s[72:73]")
    k.label(L)


def xcd_decode(k):
    k(f"s_and_b32 s{SG['xx']}, s2, 7")
    k(f"s_lshr_b32 s{SG['jj']}, s2, 3")


def xcd_tile(k, gm_shift, bm, bn, jbase=0):
    S_ = SG
    k(f"s_sub_u32 s{S_['t0']}, s{S_['jj']}, {jbase}")
    k(f"s_mul_hi_u32 s{S_['t1']}, s{S_['t0']}, {(2**32 + bn - 1) // bn}")
    k(f"s_mul_i32 s{S_['tn']}, s{S_['t1']}, {bn}")
    k(f"s_sub_u32 s{S_['tn']}, s{S_['t0']}, s{S_['tn']}")
    k(f"s_lshr_b32 s{S_['tm']}, s{S_['xx']}, {gm_shift}")
    k(f"s_mul_i32 s{S_['tm']}, s{S_['tm']}, {bm}")
    k(f"s_add_u32 s{S_['tm']}, s{S_['tm']}, s{S_['t1']}")
    k(f"s_and_b32 s{S_['t1']}, s{S_['xx']}, {(1 << gm_shift) - 1}")
    k(f"s_mul_i32 s{S_['t1']}, s{S_['t1']}, {bn}")
    k(f"s_add_u32 s{S_['tn']}, s{S_['tn']}, s{S_['t1']}")


def tile_decode(k, ntn, base):
    S_ = SG
    k(f"s_sub_u32 s{S_['id']}, s2, {base}")
    k(f"s_mul_hi_u32 s{S_['tm']}, s{S_['id']}, {(2**32 + ntn - 1) // ntn}")
    k(f"s_mul_i32 s{S_['t0']}, s{S_['tm']}, {ntn}")
    k(f"s_sub_u32 s{S_['tn']}, s{S_['id']}, s{S_['t0']}")


def epilogue_lds(g, ldo, hook=None, pre=None, post=None, ebase=None):
    k, c, S_ = g.k, g.cfg, SG
    assert c.NB == 2
    t = ebase if ebase is not None else g.fx[0]
    lane, l31, h, off, wa, ra = t, t + 1, t + 2, t + 3, t + 4, t + 5
    x, y = t + 6, t + 7
    pk = (t + 8 + 3) // 4 * 4
    z = pk + 8
    pa = z + 1
    free = (pa + 4 + 3) // 4 * 4
    rows = c.MB * 32
    k("s_barrier")
    k(f"v_and_b32 v{lane}, 63, v{g.vtid}")
    k(f"v_and_b32 v{l31}, 31, v{lane}")
    k(f"v_lshrrev_b32 v{h}, 5, v{lane}")
    k(f"s_mul_i32 s{S_['t2']}, s{S_['w']}, {rows * 128}")
    k(f"v_lshlrev_b32 v{wa}, 7, v{l31}")
    k(f"v_add_u32 v{wa}, s{S_['t2']}, v{wa}")
    k(f"v_and_b32 v{ra}, 7, v{l31}")
    k(f"v_lshrrev_b32 v{x}, 3, v{lane}")
    k(f"v_and_b32 v{y}, 7, v{lane}")
    k(f"v_lshlrev_b32 v{z}, 7, v{x}")
    k(f"v_lshl_add_u32 v{z}, v{y}, 4, v{z}")
    k(f"v_add_u32 v{z}, s{S_['t2']}, v{z}")
    k(f"s_mul_i32 s{S_['t0']}, s{S_['tm']}, {c.BM}")
    k(f"s_mul_i32 s{S_['t1']}, s{S_['wm']}, {c.MB * 32}")
    k(f"s_add_u32 s{S_['t0']}, s{S_['t0']}, s{S_['t1']}")
    k(f"s_mov_b32 s{S_['t4']}, s{S_['t0']}")
    k(f"v_add_u32 v{off}, s{S_['t0']}, v{x}")
    k(f"s_mov_b32 s{S_['t1']}, {ldo}")
    k(f"v_mul_lo_u32 v{off}, v{off}, s{S_['t1']}")
    k(f"v_xor_b32 v{y}, v{y}, v{x}")
    k(f"v_lshlrev_b32 v{y}, 4, v{y}")
    k(f"s_mul_i32 s{S_['t5']}, s{S_['tn']}, {c.BN}")
    k(f"s_mul_i32 s{S_['t1']}, s{S_['wn']}, {c.NB * 32}")
    k(f"s_add_u32 s{S_['t5']}, s{S_['t5']}, s{S_['t1']}")
    k(f"s_lshl_b32 s{S_['t0']}, s{S_['t5']}, 1")
    k(f"v_add3_u32 v{off}, v{off}, v{y}, s{S_['t0']}")
    for cb in range(c.NB):
        for qq in range(2):
            p = pa + cb * 2 + qq
            k(f"v_add_u32 v{p}, {cb * 4 + qq * 2}, v{h}")
            k(f"v_xor_b32 v{p}, v{p}, v{ra}")
            k(f"v_lshl_add_u32 v{p}, v{p}, 4, v{wa}")
    ctx = dict(lane=lane, l31=l31, h=h, free=free, row0=S_['t4'], col0=S_['t5'])
    if pre:
        pre(g, ctx)
    for rb in range(c.MB):
        for cb in range(c.NB):
            a = g.accr(cb, rb)
            if hook:
                hook(g, ctx, cb, rb, a)
            for q in range(4):
                k(f"v_cvt_pk_bf16_f32 v{pk + 2 * q}, v{a + 4 * q}, v{a + 4 * q + 1}")
                k(f"v_cvt_pk_bf16_f32 v{pk + 2 * q + 1}, v{a + 4 * q + 2}, v{a + 4 * q + 3}")
            for q in (0, 2):
                k(f"v_permlane32_swap_b32 v{pk + 2 * q}, v{pk + 2 * q + 2}")
                k(f"v_permlane32_swap_b32 v{pk + 2 * q + 1}, v{pk + 2 * q + 3}")
            k(f"ds_write_b128 v{pa + cb * 2}, {vr(pk, 4)} offset:{rb * 4096}")
            k(f"ds_write_b128 v{pa + cb * 2 + 1}, {vr(pk + 4, 4)} offset:{rb * 4096}")
    if post:
        post(g, ctx)
    k("s_waitcnt lgkmcnt(0)")
    n = rows // 8
    for j in range(n):
        k(f"ds_read_b128 {vr(g.acc + 4 * j, 4)}, v{z} offset:{j * 1024}")
    for j in range(n):
        k(f"s_waitcnt lgkmcnt({min(15, n - 1 - j)})")
        k(f"buffer_store_dwordx4 {vr(g.acc + 4 * j, 4)}, v{off}, {sr(S_['srdO'], 4)}, 0 offen")
        if j != n - 1:
            k(f"v_add_u32 v{off}, {8 * ldo}, v{off}")
    return free


def gelu_consts(k):
    k(f"s_mov_b32 s{SG['gc1']}, {f32hex(GELU_C2)}")
    k(f"s_mov_b32 s{SG['gc2']}, {f32hex(GELU_C2)}")
    k(f"s_mov_b32 s62, 1.0")
    k(f"s_mov_b32 s63, 1.0")


def gelu_block(k, a, n, t):
    assert SG['gc1'] % 2 == 0 and t % 2 == 0 and a % 2 == 0
    c2 = sr(SG['gc1'], 2)
    c1 = t + 8
    k(f"v_mov_b32 v{c1}, {f32hex(GELU_C1)}")
    k(f"v_mov_b32 v{c1 + 1}, {f32hex(GELU_C1)}")
    for i0 in range(0, n, 8):
        for j in range(4):
            k(f"v_pk_mul_f32 {vr(t + 2 * j, 2)}, {vr(a + i0 + 2 * j, 2)}, {vr(a + i0 + 2 * j, 2)}")
        for j in range(4):
            k(f"v_pk_fma_f32 {vr(t + 2 * j, 2)}, {vr(t + 2 * j, 2)}, {c2}, {vr(c1, 2)}")
        for j in range(4):
            k(f"v_pk_mul_f32 {vr(t + 2 * j, 2)}, {vr(t + 2 * j, 2)}, {vr(a + i0 + 2 * j, 2)}")
        for j in range(8):
            k(f"v_exp_f32 v{t + j}, v{t + j}")
        for j in range(4):
            k(f"v_pk_add_f32 {vr(t + 2 * j, 2)}, {vr(t + 2 * j, 2)}, s[62:63]")
        for j in range(8):
            k(f"v_rcp_f32 v{t + j}, v{t + j}")
        for j in range(4):
            k(f"v_pk_mul_f32 {vr(a + i0 + 2 * j, 2)}, {vr(a + i0 + 2 * j, 2)}, {vr(t + 2 * j, 2)}")


def std_adv(ldb):
    def adv(k):
        k(f"s_add_u32 s{SG['koffA']}, s{SG['koffA']}, 128")
        k(f"s_add_u32 s{SG['koffB']}, s{SG['koffB']}, {64 * ldb}")
    return adv


def gen_l0():
    k = Kernel("l0_kernel")
    S_ = SG
    Lend = k.newlabel("end"); Lgate = k.newlabel("gate"); Lng = k.newlabel("ng")
    k("s_cmp_ge_u32 s2, 512")
    k(f"s_cbranch_scc1 {Lend}")
    load_ptr(k, S_['ws'], "ws")
    k("v_and_b32 v1, 63, v0")
    k("v_lshrrev_b32 v2, 6, v0")
    k(f"v_readfirstlane_b32 s{S_['w']}, v2")
    k("v_lshlrev_b32 v3, 4, v1")
    load_ptr(k, 60, "w2")
    k("s_waitcnt lgkmcnt(0)")
    srd(k, S_['srdZ'], 60, D * D * 2)
    k(f"s_lshl_b32 s{S_['t1']}, s{S_['w']}, 9")
    k(f"s_lshl_b32 s{S_['t2']}, s2, 12")
    k(f"s_add_u32 s{S_['t1']}, s{S_['t1']}, s{S_['t2']}")
    k("v_lshlrev_b32 v50, 3, v1")
    k(f"buffer_load_dwordx2 v[52:53], v50, {sr(S_['srdZ'], 4)}, s{S_['t1']} offen")
    k("s_cmp_ge_u32 s2, 256")
    k(f"s_cbranch_scc1 {Lgate}")
    load_ptr(k, 4, "A_x")
    k("s_waitcnt lgkmcnt(0)")
    srd(k, S_['srdA'], 4, S * D * 2)
    srd(k, S_['srdO'], S_['ws'], S * D * 2, WS_XN1)
    k("s_cmp_ge_u32 s2, 4")
    k(f"s_cbranch_scc1 {Lng}")
    k(f"s_cmp_lg_u32 s{S_['w']}, 0")
    k(f"s_cbranch_scc1 {Lng}")
    srd(k, S_['srdX'], S_['ws'], 4096 + S * D * 2 + 4096, WS_HG)
    k(f"s_lshl_b32 s{S_['t0']}, s2, 11")
    k(f"s_cmp_ge_u32 s2, 2")
    k(f"s_cselect_b32 s{S_['t1']}, {S * D * 2}, 0")
    k(f"s_add_u32 s{S_['t0']}, s{S_['t0']}, s{S_['t1']}")
    for i in range(4):
        k(f"v_mov_b32 v{40 + i}, 0")
    k(f"buffer_store_dwordx4 v[40:43], v3, {sr(S_['srdX'], 4)}, s{S_['t0']} offen")
    k(f"buffer_store_dwordx4 v[40:43], v3, {sr(S_['srdX'], 4)}, s{S_['t0']} offen offset:1024")
    k.label(Lng)
    Lnf = k.newlabel("nf")
    k("s_cmp_lg_u32 s2, 4")
    k(f"s_cbranch_scc1 {Lnf}")
    srd(k, S_['srdX'], S_['ws'], 16384, WS_FLAG)
    k(f"s_lshl_b32 s{S_['t0']}, s{S_['w']}, 11")
    for i in range(4):
        k(f"v_mov_b32 v{40 + i}, 0")
    k(f"buffer_store_dwordx4 v[40:43], v3, {sr(S_['srdX'], 4)}, s{S_['t0']} offen")
    k(f"buffer_store_dwordx4 v[40:43], v3, {sr(S_['srdX'], 4)}, s{S_['t0']} offen offset:1024")
    k.label(Lnf)
    k(f"s_lshl_b32 s{S_['t0']}, s2, 3")
    k(f"s_add_u32 s{S_['t0']}, s{S_['t0']}, s{S_['w']}")
    k(f"s_lshl_b32 s{S_['t0']}, s{S_['t0']}, 11")
    k(f"buffer_load_dwordx4 v[4:7], v3, {sr(S_['srdA'], 4)}, s{S_['t0']} offen")
    k(f"buffer_load_dwordx4 v[8:11], v3, {sr(S_['srdA'], 4)}, s{S_['t0']} offen offset:1024")
    k("s_waitcnt vmcnt(0)")
    unpack8(k, 4, 16); unpack8(k, 8, 24)
    k("v_add_f32 v32, v16, v17")
    for i in range(2, 16):
        k(f"v_add_f32 v32, v32, v{16 + i}")
    allreduce(k, 32, 33)
    k(f"v_mul_f32 v32, {f32hex(1.0 / D)}, v32")
    k("v_sub_f32 v34, v16, v32")
    k("v_mul_f32 v35, v34, v34")
    for i in range(1, 16):
        k(f"v_sub_f32 v34, v{16 + i}, v32")
        k("v_fmac_f32 v35, v34, v34")
    allreduce(k, 35, 33)
    k(f"v_mul_f32 v35, {f32hex(1.0 / D)}, v35")
    bf16r2(k, 32, 35, 33)
    k(f"v_add_f32 v35, {f32hex(1e-5)}, v35")
    bf16r1(k, 35, 33)
    k("v_sqrt_f32 v35, v35")
    bf16r1(k, 35, 33)
    k("v_rcp_f32 v35, v35")
    for i in range(16):
        k(f"v_sub_f32 v{16 + i}, v{16 + i}, v32")
    for i in range(0, 16, 2):
        bf16r2(k, 16 + i, 17 + i, 33)
    for i in range(16):
        k(f"v_mul_f32 v{16 + i}, v{16 + i}, v35")
    for i in range(8):
        k(f"v_cvt_pk_bf16_f32 v{4 + i}, v{16 + 2 * i}, v{17 + 2 * i}")
    k(f"buffer_store_dwordx4 v[4:7], v3, {sr(S_['srdO'], 4)}, s{S_['t0']} offen")
    k(f"buffer_store_dwordx4 v[8:11], v3, {sr(S_['srdO'], 4)}, s{S_['t0']} offen offset:1024")
    k("s_endpgm")
    k.label(Lgate)
    load_ptr(k, 4, "A_x")
    load_ptr(k, 6, "gate_w")
    k("s_waitcnt lgkmcnt(0)")
    srd(k, S_['srdA'], 4, S * D * 2)
    srd(k, S_['srdB'], 6, D * 2)
    srd(k, S_['srdO'], S_['ws'], S * 4, WS_G)
    k(f"s_sub_u32 s{S_['t0']}, s2, 256")
    k(f"s_lshl_b32 s{S_['t0']}, s{S_['t0']}, 3")
    k(f"s_add_u32 s{S_['t0']}, s{S_['t0']}, s{S_['w']}")
    k(f"s_lshl_b32 s{S_['t1']}, s{S_['t0']}, 11")
    k(f"buffer_load_dwordx4 v[4:7], v3, {sr(S_['srdA'], 4)}, s{S_['t1']} offen")
    k(f"buffer_load_dwordx4 v[8:11], v3, {sr(S_['srdA'], 4)}, s{S_['t1']} offen offset:1024")
    k(f"buffer_load_dwordx4 v[40:43], v3, {sr(S_['srdB'], 4)}, 0 offen")
    k(f"buffer_load_dwordx4 v[44:47], v3, {sr(S_['srdB'], 4)}, 0 offen offset:1024")
    k("s_waitcnt vmcnt(0)")
    unpack8(k, 4, 16); unpack8(k, 8, 24)
    unpack8(k, 40, 48); unpack8(k, 44, 56)
    for i in range(16):
        k(f"v_mul_f32 v{16 + i}, v{16 + i}, v{48 + i}")
    for i in range(0, 16, 2):
        bf16r2(k, 16 + i, 17 + i, 33)
    k("v_add_f32 v32, v16, v17")
    for i in range(2, 16):
        k(f"v_add_f32 v32, v32, v{16 + i}")
    allreduce(k, 32, 33)
    bf16r1(k, 32, 33)
    k(f"v_mul_f32 v32, {f32hex(-LOG2E)}, v32")
    k("v_exp_f32 v32, v32")
    k("v_add_f32 v32, 1.0, v32")
    k("v_rcp_f32 v32, v32")
    bf16r1(k, 32, 33)
    k(f"s_lshl_b32 s{S_['t1']}, s{S_['t0']}, 2")
    k("v_cmp_eq_u32 vcc, 0, v1")
    k("s_and_saveexec_b64 s[56:57], vcc")
    k("v_mov_b32 v34, 0")
    k(f"buffer_store_dword v32, v34, {sr(S_['srdO'], 4)}, s{S_['t1']} offen")
    k.label(Lend)
    k("s_endpgm")
    return k, 64, 512, 0


def build(kernels, path):
    head = HEADER
    body, descs = [], []
    for kk_ in kernels:
        k, vg, grid, lds = kk_[:4]
        blk = kk_[4] if len(kk_) > 4 else 512
        head += f"; @launch kernel={k.name} grid=({grid},1,1) block=({blk},1,1) lds={lds}\n"
        b, d = kernel_text(k, vg)
        body.append(b); descs.append(d)
    txt = head + '.amdgcn_target "amdgcn-amd-amdhsa--gfx950"\n' + "\n".join(body) + "\n" + "\n".join(descs) + "\n"
    open(path, "w").write(txt)
    return txt


if __name__ == "__main__":
    out = sys.argv[1] if len(sys.argv) > 1 else "test_all.s"
    import launches
    build(launches.all_kernels(), out)
    print("wrote", out)
```
